```python
import torch

def _softmax(x, axis=-1):
    return torch.softmax(x, dim=axis)
def _gelu(x):
    return torch.nn.functional.gelu(x, approximate="tanh")
def _silu(x):
    return torch.nn.functional.silu(x)
def _sigmoid(x):
    return torch.sigmoid(x)
def _layernorm(x, axis=-1, eps=1e-5):
    m = x.mean(dim=axis, keepdim=True)
    v = x.var(dim=axis, keepdim=True, unbiased=False)
    return (x - m) / torch.sqrt(v + eps)
def _scatter_add(tgt, idx, src, axis=0):
    return tgt.clone().index_add_(axis, idx, src)
def _segment_sum(src, seg, n):
    out = torch.zeros((n,) + src.shape[1:], dtype=src.dtype)
    return out.index_add_(0, seg, src)
def _pad(x, pw):
    flat = tuple(v for pair in reversed(pw) for v in pair)
    return torch.nn.functional.pad(x, flat)

kernel_name = 'gated_mix__sliding_block_cached__sliding_block_cached__decode'

def setup_inputs():

    _w = (lambda a: (lambda t: t.to(torch.bfloat16) if t.is_floating_point() else t)(torch.as_tensor(a)))
    def _A_setup():
        B, Sq, D = 1, 1, 512
        Hq, Hkv, Sk, Dh = 32, 8, 65536, 128
        assert Hq % Hkv == 0, (Hq, Hkv)
        return {
            "x": _w((lambda *s: torch.randn(*s, dtype=torch.bfloat16) * 0.05)(B, Sq, D)),
            "k_cache": _w((lambda *s: torch.randn(*s, dtype=torch.bfloat16) * 6.4)(B, Hkv, Sk, Dh)),
            "v_cache": _w((lambda *s: torch.randn(*s, dtype=torch.bfloat16) * 0.05)(B, Hkv, Sk, Dh)),
            "wq": _w((lambda *s: torch.randn(*s, dtype=torch.bfloat16) * 6.4)(D, Hq * Dh) * (D ** -0.5)),
            "wo": _w((lambda *s: torch.randn(*s, dtype=torch.bfloat16) * 0.05)(Hq * Dh, D) * ((Hq * Dh) ** -0.5)),
        }
    _A_in = _A_setup()

    def _B_setup():
        B, Sq, D = 1, 1, 512
        Hq, Hkv, Sk, Dh = 32, 8, 65536, 128
        assert Hq % Hkv == 0, (Hq, Hkv)
        return {
            "x": _w((lambda *s: torch.randn(*s, dtype=torch.bfloat16) * 0.05)(B, Sq, D)),
            "k_cache": _w((lambda *s: torch.randn(*s, dtype=torch.bfloat16) * 6.4)(B, Hkv, Sk, Dh)),
            "v_cache": _w((lambda *s: torch.randn(*s, dtype=torch.bfloat16) * 0.05)(B, Hkv, Sk, Dh)),
            "wq": _w((lambda *s: torch.randn(*s, dtype=torch.bfloat16) * 6.4)(D, Hq * Dh) * (D ** -0.5)),
            "wo": _w((lambda *s: torch.randn(*s, dtype=torch.bfloat16) * 0.05)(Hq * Dh, D) * ((Hq * Dh) ** -0.5)),
        }
    _B_in = _B_setup()

    return {
        "A_x": _A_in["x"],
        "A_k_cache": _A_in["k_cache"],
        "A_v_cache": _A_in["v_cache"],
        "A_wq": _A_in["wq"],
        "A_wo": _A_in["wo"],
        "B_x": _B_in["x"],
        "B_k_cache": _B_in["k_cache"],
        "B_v_cache": _B_in["v_cache"],
        "B_wq": _B_in["wq"],
        "B_wo": _B_in["wo"],
        "gate_w": _w((lambda *s: torch.randn(*s, dtype=torch.bfloat16) * 0.05)(512) * 16.0),
    }

def reference(A_x, A_k_cache, A_v_cache, A_wq, A_wo, B_x, B_k_cache, B_v_cache, B_wq, B_wo, gate_w):
    def _A_ref(x, k_cache, v_cache, wq, wo):
        B, Sq, D = x.shape
        Hq, Dh = 32, 128
        Hkv, Sk = k_cache.shape[1], k_cache.shape[2]
        W = min(4096, max(256, Sk // 4))
        rep = Hq // Hkv
        q = (lambda x, *d: x.permute(*d))((x @ wq).reshape(B, Sq, Hq, Dh), 0, 2, 1, 3)
        k = (lambda x, n, axis: torch.repeat_interleave(x, n, dim=axis))(k_cache[:, :, Sk - W:, :], rep, axis=1)
        v = (lambda x, n, axis: torch.repeat_interleave(x, n, dim=axis))(v_cache[:, :, Sk - W:, :], rep, axis=1)
        scores = torch.einsum("bhqd,bhkd->bhqk", q, k) * (Dh ** -0.5)
        p = _softmax(scores, axis=-1)
        o = torch.einsum("bhqk,bhkd->bhqd", p, v)
        return (lambda x, *d: x.permute(*d))(o, 0, 2, 1, 3).reshape(B, Sq, Hq * Dh) @ wo

    def _B_ref(x, k_cache, v_cache, wq, wo):
        B, Sq, D = x.shape
        Hq, Dh = 32, 128
        Hkv, Sk = k_cache.shape[1], k_cache.shape[2]
        W = min(4096, max(256, Sk // 4))
        rep = Hq // Hkv
        q = (lambda x, *d: x.permute(*d))((x @ wq).reshape(B, Sq, Hq, Dh), 0, 2, 1, 3)
        k = (lambda x, n, axis: torch.repeat_interleave(x, n, dim=axis))(k_cache[:, :, Sk - W:, :], rep, axis=1)
        v = (lambda x, n, axis: torch.repeat_interleave(x, n, dim=axis))(v_cache[:, :, Sk - W:, :], rep, axis=1)
        scores = torch.einsum("bhqd,bhkd->bhqk", q, k) * (Dh ** -0.5)
        p = _softmax(scores, axis=-1)
        o = torch.einsum("bhqk,bhkd->bhqd", p, v)
        return (lambda x, *d: x.permute(*d))(o, 0, 2, 1, 3).reshape(B, Sq, Hq * Dh) @ wo

    x = A_x
    g = _sigmoid((x * gate_w).sum(-1, keepdims=True))
    a = _A_ref(x, A_k_cache, A_v_cache, A_wq, A_wo)
    b = _B_ref(x, B_k_cache, B_v_cache, B_wq, B_wo)
    return g * a + (1 - g) * b
```

```python
import sys
from asmlib import *

HOP1 = 0x10000
BOX = 0x40000
BO, BY, BM = 0, 1024, 1536
AO, AM = 2048, 3072
STAMP = 512 << 20
C1, C2, C3, C4, C5, C6, FFLAG, CK, CV, CCLR = 0, 4, 8, 12, 16, 20, 24, 28, 48, 52
PFLAG = 32
MMAX = 0x40
FVEC = 0x80
LSUM = 0x100
QLDS = 0x200
PLDS = 0x800
QPART = 0x1000
YPART = 0x1800
OPART = 0x2000
LDS_BYTES = 0x4000
DPPALL = "row_mask:0xf bank_mask:0xf"

class G:
    def __init__(self, stamps):
        self.L = []; self.stamps = stamps; self.nlab = 0
    def a(self, s):
        for ln in s.strip("\n").split("\n"):
            t = ln.strip()
            if not t: continue
            self.L.append(t if t.endswith(":") else "    " + t)
    def lab(self, p="L"):
        self.nlab += 1; return f"{p}_{self.nlab}"
    def stamp(self, k):
        if self.stamps: self.a(f"s_memrealtime s[{64+2*k}:{65+2*k}]")
    def flush_stamps(self, slots):
        if not self.stamps: return
        self.a("s_waitcnt lgkmcnt(0)")
        self.a("s_mov_b64 exec, 1")
        self.a(f"s_lshl_b32 s8, s2, 8\ns_add_u32 s8, s8, {STAMP}\ns_add_u32 s8, s30, s8\ns_addc_u32 s9, s31, 0")
        self.a("v_mov_b32 v2, 0")
        for k, slot in slots:
            self.a(f"v_mov_b32 v4, s{64+2*k}\nv_mov_b32 v5, s{65+2*k}\nglobal_store_dwordx2 v2, v[4:5], s[8:9] offset:{8*slot}\ns_nop 1")
        self.a("s_mov_b64 exec, -1")
    def lds_spin(self, off, val, vaddr0="v3", tmp="v2", sleep=0):
        l = self.lab("Lspin"); e = self.lab("Lspe")
        self.a(f"s_mov_b32 s42, 0x400000")
        self.a(f"{l}:")
        if sleep: self.a(f"s_sleep {sleep}")
        self.a(f"ds_read_b32 {tmp}, {vaddr0} offset:{off}")
        self.a("s_sub_u32 s42, s42, 1")
        self.a(f"s_cbranch_scc1 {e}")
        self.a("s_waitcnt lgkmcnt(0)")
        self.a(f"v_cmp_gt_u32 vcc, {val}, {tmp}")
        self.a(f"s_cbranch_vccnz {l}")
        self.a(f"{e}:")
    def arrive(self, off, rtn=None, vz="v3", one="v7"):
        self.a("s_mov_b64 exec, 1")
        if rtn: self.a(f"ds_add_rtn_u32 {rtn}, {vz}, {one} offset:{off}")
        else:
            self.a(f"ds_add_u32 {vz}, {one} offset:{off}")
            self.a("s_mov_b64 exec, -1")

def gen(stamps=False, hint=1, fast2=0, kvmap="il", touch=1):
    g = G(stamps); a = g.a
    KVSTRIDE = 65536 if kvmap == "il" else 4096
    g.stamp(0)
    a("""
    s_and_b32 s8, s2, 8
    s_mul_i32 s8, s8, 5
    s_add_u32 s8, s0, s8
    s_addc_u32 s9, s1, 0
    s_load_dwordx8 s[12:19], s[8:9], 8
    s_load_dwordx2 s[20:21], s[0:1], 0
    s_load_dwordx8 s[24:31], s[0:1], 80
    s_cmp_ge_u32 s2, 256
    s_cbranch_scc1 L_end
    v_lshrrev_b32 v2, 6, v0
    v_and_b32 v1, 63, v0
    v_readfirstlane_b32 s7, v2
    s_and_b32 s3, s2, 15
    s_lshr_b32 s4, s2, 4
    s_and_b32 s5, s2, 7
    s_lshl_b32 s10, s3, 4
    s_add_u32 s10, s10, s4
    s_and_b32 s6, s7, 3
    s_lshr_b32 s7, s7, 2
    v_mov_b32 v3, 0
    v_mov_b32 v7, 1
    v_lshlrev_b32 v6, 4, v1
    s_cmp_lg_u32 s7, 0
    s_cbranch_scc1 L_notQ
    """)
    a("""
    s_setprio 3
    v_lshrrev_b32 v2, 3, v1
    v_and_b32 v5, 7, v1
    v_lshlrev_b32 v4, 16, v2
    v_lshl_add_u32 v4, v5, 4, v4
    v_lshlrev_b32 v5, 4, v2
    s_and_b32 s22, s4, 1
    s_lshl_b32 s22, s22, 2
    s_add_u32 s22, s22, s6
    s_lshl_b32 s23, s22, 19
    s_lshl_b32 s22, s22, 7
    s_lshl_b32 s8, s5, 10
    s_add_u32 s23, s23, s8
    s_lshr_b32 s8, s4, 1
    s_lshl_b32 s8, s8, 7
    s_add_u32 s23, s23, s8
    s_movk_i32 s9, 0x2000
    s_waitcnt lgkmcnt(0)
    s_add_u32 s34, s20, s22
    s_addc_u32 s35, s21, 0
    s_add_u32 s16, s16, s23
    s_addc_u32 s17, s17, 0
    global_load_dwordx4 v[12:15], v5, s[34:35]
    """)
    for i in range(8):
        a(f"global_load_dwordx4 v[{16+4*i}:{19+4*i}], v4, s[16:17] nt")
        if i < 7: a("v_add_u32 v4, s9, v4")
    a("s_barrier")
    a("s_load_dword s11, s[30:31], 0")
    g.stamp(1)
    a("s_branch L_Q2")
    a("""
L_notQ:
    v_mov_b32 v4, 0xff800000
    v_cmp_gt_u32 vcc, 16, v1
    v_lshlrev_b32 v5, 2, v1
    s_lshl_b32 s22, s5, 24
    v_cndmask_b32 v4, v4, v3, vcc
    ds_write_b32 v5, v4
    """)
    if kvmap == "il":
        a("s_lshl_b32 s23, s4, 12")
    else:
        a("s_lshl_b32 s23, s4, 16")
    a(f"""
    s_add_u32 s22, s22, s23
    s_lshl_b32 s23, s6, 10
    s_add_u32 s22, s22, s23
    s_add_u32 s22, s22, {61440*256}
    s_mov_b32 s9, {KVSTRIDE}
    s_cmp_eq_u32 s7, 2
    s_cbranch_scc1 L_V0
    s_setprio 2
    v_bfe_u32 v8, v1, 2, 2
    v_lshlrev_b32 v4, 8, v8
    v_lshrrev_b32 v9, 4, v1
    v_lshl_add_u32 v4, v9, 6, v4
    v_and_b32 v10, 3, v1
    v_lshl_add_u32 v4, v10, 4, v4
    v_mov_b32 v5, v4
    s_waitcnt lgkmcnt(0)
    s_add_u32 s34, s12, s22
    s_addc_u32 s35, s13, 0
    s_barrier
    """)
    for i in range(16):
        a(f"global_load_dwordx4 v[{16+4*i}:{19+4*i}], v5, s[34:35] nt")
        if i < 15: a("v_add_u32 v5, s9, v5")
    g.arrive(CK)
    a("s_load_dword s11, s[30:31], 0")
    g.stamp(1)
    a("s_branch L_K2")
    a(f"""
L_V0:
    s_setprio 1
    s_lshl_b32 s8, s10, 12
    s_lshl_b32 s23, s6, 10
    s_add_u32 s8, s8, {BOX}
    v_mov_b32 v8, -1
    v_mov_b32 v9, -1
    v_mov_b32 v10, -1
    v_mov_b32 v11, -1
    v_add_u32 v5, s23, v6
    s_waitcnt lgkmcnt(0)
    s_add_u32 s36, s30, s8
    s_addc_u32 s37, s31, 0
    s_add_u32 s14, s14, s22
    s_addc_u32 s15, s15, 0
    global_store_dwordx4 v5, v[8:11], s[36:37] sc1
    s_barrier
    """)
    if touch:
        a("""
    s_cmp_eq_u32 s6, 0
    s_cbranch_scc1 L_stub_0
    s_cmp_eq_u32 s6, 1
    s_cbranch_scc1 L_stub_1
    s_cmp_eq_u32 s6, 2
    s_cbranch_scc1 L_stub_2
    s_branch L_stub_3
        """)
    a("L_touch_ret:")
    g.stamp(5)
    a("s_waitcnt vmcnt(0)")
    g.arrive(CCLR)
    g.lds_spin(CK, 4)
    a("v_mov_b32 v5, v6")
    for i in range(16):
        a(f"global_load_dwordx4 v[{16+4*i}:{19+4*i}], v5, s[14:15] nt")
        if i < 15: a("v_add_u32 v5, s9, v5")
    g.arrive(CV)
    g.stamp(1)
    a("""
    s_mov_b32 s52, 0x05040100
    s_mov_b32 s53, 0x07060302
    s_mov_b32 s44, 0x11111111
    s_mov_b32 s45, 0x11111111
    s_lshl_b64 s[46:47], s[44:45], 1
    s_lshl_b64 s[48:49], s[44:45], 2
    s_lshl_b64 s[50:51], s[44:45], 3
    s_lshl_b32 s8, s6, 2
    v_mov_b32 v4, s8
    v_lshrrev_b32 v2, 4, v1
    v_lshlrev_b32 v5, 6, v2
    v_bfe_u32 v2, v1, 2, 2
    v_lshl_add_u32 v5, v2, 4, v5
    s_lshl_b32 s8, s6, 9
    v_add_u32 v5, s8, v5
    """)
    def perms(src, dst, waits):
        for t in range(4):
            if waits is not None: a(f"s_waitcnt vmcnt({waits[t]})")
            for r in range(4):
                s1 = src + 8*t + r; s0 = src + 8*t + 4 + r
                a(f"v_perm_b32 v{dst+4*(2*r)+t}, v{s0}, v{s1}, s52")
                a(f"v_perm_b32 v{dst+4*(2*r+1)+t}, v{s0}, v{s1}, s53")
    perms(16, 80, [14, 12, 10, 8])
    g.lds_spin(PFLAG, 1, vaddr0="v4")
    g.stamp(2)
    a(f"ds_read_b128 v[8:11], v5 offset:{PLDS}")
    a(f"ds_read_b128 v[12:15], v5 offset:{PLDS+256}")
    a("s_lshl_b32 s8, s6, 11")
    a("v_add_u32 v5, s8, v6")
    a("s_waitcnt lgkmcnt(0)")
    for b in range(2):
        for var in range(4):
            for r in range(4):
                a(f"v_cndmask_b32 v{112+16*b+4*var+r}, 0, v{8+4*b+r}, s[{44+2*var}:{45+2*var}]")
    a("s_nop 1")
    for j in range(8):
        acc = 144 + 4*(j//4); var = j % 4
        c = "0" if var == 0 else f"v[{acc}:{acc+3}]"
        a(f"v_mfma_f32_16x16x32_bf16 v[{acc}:{acc+3}], v[{112+4*var}:{115+4*var}], v[{80+4*j}:{83+4*j}], {c}")
    perms(48, 16, [6, 4, 2, 0])
    g.stamp(3)
    for j in range(8):
        acc = 144 + 4*(j//4); var = j % 4
        a(f"v_mfma_f32_16x16x32_bf16 v[{acc}:{acc+3}], v[{128+4*var}:{131+4*var}], v[{16+4*j}:{19+4*j}], v[{acc}:{acc+3}]")
    a(f"""
    s_nop 3
    ds_write_b128 v5, v[144:147] offset:{OPART}
    s_nop 2
    ds_write_b128 v5, v[148:151] offset:{OPART+1024}
    """)
    g.arrive(C5, rtn="v2")
    a("""
    s_waitcnt lgkmcnt(0)
    v_cmp_ne_u32 vcc, 3, v2
    s_mov_b64 exec, -1
    s_cbranch_vccnz L_Vend
    """)
    for p in range(4):
        a(f"ds_read_b128 v[{16+8*p}:{19+8*p}], v6 offset:{OPART+2048*p}")
        a(f"ds_read_b128 v[{20+8*p}:{23+8*p}], v6 offset:{OPART+2048*p+1024}")
    a("s_waitcnt lgkmcnt(4)")
    for k in range(4): a(f"v_pk_add_f32 v[{16+2*k}:{17+2*k}], v[{16+2*k}:{17+2*k}], v[{24+2*k}:{25+2*k}]")
    a("s_waitcnt lgkmcnt(0)")
    for k in range(4): a(f"v_pk_add_f32 v[{32+2*k}:{33+2*k}], v[{32+2*k}:{33+2*k}], v[{40+2*k}:{41+2*k}]")
    for k in range(4): a(f"v_pk_add_f32 v[{16+2*k}:{17+2*k}], v[{16+2*k}:{17+2*k}], v[{32+2*k}:{33+2*k}]")
    for k in range(4): a(f"v_cvt_pk_bf16_f32 v{8+k}, v{16+2*k}, v{17+2*k}")
    for k in range(4): a(f"v_min_u32 v{8+k}, -2, v{8+k}")
    if fast2: a(f"global_store_dwordx4 v6, v[8:11], s[36:37] offset:{AO}")
    a(f"global_store_dwordx4 v6, v[8:11], s[36:37] offset:{BO} sc1")
    g.stamp(4)
    g.flush_stamps([(4, 20)])
    a("L_Vend:")
    if stamps:
        a("s_cmp_lg_u32 s6, 3\ns_cbranch_scc1 L_end")
        g.flush_stamps([(5, 16), (1, 17), (2, 18), (3, 19)])
    a("s_endpgm")

    a("L_Q2:")
    a("""
    v_and_b32 v2, 1, v1
    v_lshlrev_b32 v2, 4, v2
    v_mov_b32 v4, 0xffff
    v_lshlrev_b32 v4, v2, v4
    v_bfe_u32 v2, v1, 1, 2
    s_mov_b32 s52, 0x01000100
    s_mov_b32 s53, 0x03020302
    """)
    for r in range(4):
        a(f"v_cmp_eq_u32 vcc, {r}, v2\ns_nop 1\nv_cndmask_b32 v{80+r}, 0, v4, vcc")
    a(f"""
    v_lshrrev_b32 v2, 5, v1
    v_lshlrev_b32 v5, 8, v2
    v_and_b32 v2, 7, v1
    v_lshl_add_u32 v5, v2, 5, v5
    v_and_b32 v2, 16, v1
    v_add_u32 v5, v5, v2
    s_lshl_b32 s8, s6, 9
    v_add_u32 v5, s8, v5
    s_mov_b32 s44, 0x00ff00ff
    s_mov_b32 s45, 0xff00ff00
    s_lshl_b32 s8, s10, 9
    s_add_u32 s8, s8, {HOP1}
    s_add_u32 s36, s30, s8
    s_addc_u32 s37, s31, 0
    s_waitcnt vmcnt(8) lgkmcnt(0)
    s_add_u32 s11, s11, 0x9E3779B9
    """)
    for i in range(8):
        a(f"v_perm_b32 v2, v{12+i//2}, v{12+i//2}, s{52+i%2}")
        for r in range(4):
            a(f"v_and_b32 v{48+4*i+r}, v2, v{80+r}")
    a("v_mov_b32 v9, s11\nv_mov_b32 v11, s11\nv_lshlrev_b32 v4, 3, v1")
    for i in range(8):
        a(f"s_waitcnt vmcnt({7-i})")
        c = "0" if i == 0 else "v[84:87]"
        a(f"v_mfma_f32_16x16x32_bf16 v[84:87], v[{48+4*i}:{51+4*i}], v[{16+4*i}:{19+4*i}], {c}")
    g.stamp(2)
    a(f"""
    s_mov_b64 exec, s[44:45]
    s_nop 6
    ds_write_b128 v5, v[84:87] offset:{QPART}
    """)
    g.arrive(C1, rtn="v2")
    a(f"""
    s_waitcnt lgkmcnt(0)
    v_cmp_ne_u32 vcc, 3, v2
    s_mov_b64 exec, -1
    s_cbranch_vccnz L_W0
    s_mov_b32 exec_hi, 0
    """)
    for p in range(4):
        a(f"ds_read_b64 v[{48+4*p}:{49+4*p}], v4 offset:{QPART+512*p}\nds_read_b64 v[{50+4*p}:{51+4*p}], v4 offset:{QPART+512*p+256}")
    g.lds_spin(CCLR, 4)
    a("""
    v_pk_add_f32 v[48:49], v[48:49], v[50:51]
    v_pk_add_f32 v[52:53], v[52:53], v[54:55]
    v_pk_add_f32 v[56:57], v[56:57], v[58:59]
    v_pk_add_f32 v[60:61], v[60:61], v[62:63]
    v_pk_add_f32 v[48:49], v[48:49], v[52:53]
    v_pk_add_f32 v[56:57], v[56:57], v[60:61]
    v_add_f32 v8, v48, v56
    v_add_f32 v10, v49, v57
    global_store_dwordx4 v6, v[8:11], s[36:37] sc1
    s_mov_b64 exec, -1
    """)
    g.stamp(3)
    g.flush_stamps([(3, 3)])
    a(f"""
L_W0:
    s_lshl_b32 s8, s5, 19
    s_lshr_b32 s9, s4, 2
    s_lshl_b32 s22, s9, 17
    s_add_u32 s8, s8, s22
    s_lshl_b32 s22, s6, 15
    s_add_u32 s8, s8, s22
    s_and_b32 s22, s4, 3
    s_lshl_b32 s22, s22, 8
    s_add_u32 s8, s8, s22
    s_add_u32 s8, s8, 4096
    s_add_u32 s34, s18, s8
    s_addc_u32 s35, s19, 0
    v_lshrrev_b32 v2, 4, v1
    v_and_b32 v5, 15, v1
    v_lshlrev_b32 v4, 13, v2
    v_lshl_add_u32 v4, v5, 4, v4
    v_lshlrev_b32 v8, 5, v5
    v_lshl_add_u32 v8, v2, 3, v8
    v_lshlrev_b32 v5, 12, v5
    v_lshl_add_u32 v5, v2, 4, v5
    v_lshlrev_b32 v9, 4, v2
    s_lshl_b32 s8, s6, 9
    v_add_u32 v8, s8, v8
    s_lshl_b32 s8, s3, 16
    s_lshl_b32 s9, s9, 8
    s_add_u32 s8, s8, s9
    s_lshl_b32 s9, s6, 6
    s_add_u32 s8, s8, s9
    s_add_u32 s8, s8, {BOX}
    s_add_u32 s38, s30, s8
    s_addc_u32 s39, s31, 0
    s_lshl_b32 s8, s10, 12
    s_add_u32 s8, s8, {BOX}
    s_add_u32 s36, s30, s8
    s_addc_u32 s37, s31, 0
    s_mov_b32 s52, 0x05040100
    s_mov_b32 s53, 0x07060302
    """)
    g.lds_spin(CV, 4, sleep=1)
    a("s_waitcnt vmcnt(0)")
    for i in range(8):
        a(f"global_load_dwordx4 v[{16+4*i}:{19+4*i}], v4, s[34:35] offset:{i*1024-4096} nt")
    g.stamp(5)
    g.lds_spin(C2, 4, sleep=1)
    perms(16, 48, [6, 4, 2, 0])
    g.stamp(6)
    a("s_mov_b32 s42, 0x40000")
    if not fast2:
        a(f"""
L_Opoll_loop:
    global_load_dwordx4 v[80:83], v5, s[38:39] offset:{BO} sc1
    s_sub_u32 s42, s42, 1
    s_cbranch_scc1 L_Opoll_done
    s_waitcnt vmcnt(0)
    v_max3_u32 v2, v80, v81, v82
    v_max_u32 v2, v2, v83
    v_cmp_eq_u32 vcc, -1, v2
    s_cbranch_vccnz L_Opoll_loop
L_Opoll_done:
        """)
    else:
        a(f"""
L_Opoll_loop:
    global_load_dwordx4 v[80:83], v5, s[38:39] offset:{AO} sc1
    s_sub_u32 s42, s42, 1
    s_cbranch_scc1 L_Opoll_done
    s_waitcnt vmcnt(0)
    v_max3_u32 v2, v80, v81, v82
    v_max_u32 v2, v2, v83
    v_cmp_eq_u32 vcc, -1, v2
    s_cbranch_vccz L_Opoll_done
    s_and_b32 s8, s42, 7
    s_cbranch_scc1 L_Opoll_loop
    global_load_dwordx4 v[80:83], v5, s[38:39] offset:{BO} sc1
    s_waitcnt vmcnt(0)
    v_max3_u32 v2, v80, v81, v82
    v_max_u32 v2, v2, v83
    v_cmp_eq_u32 vcc, -1, v2
    s_cbranch_vccnz L_Opoll_loop
L_Opoll_done:
        """)
    g.stamp(7)
    for j in range(8):
        a(f"v_mfma_f32_16x16x32_bf16 v[{16+4*j}:{19+4*j}], v[80:83], v[{48+4*j}:{51+4*j}], 0")
    g.lds_spin(FFLAG, 1)
    a(f"ds_read_b128 v[84:87], v9 offset:{FVEC}")
    a("s_waitcnt lgkmcnt(0)")
    for j in range(8):
        a(f"v_pk_mul_f32 v[{16+4*j}:{17+4*j}], v[{16+4*j}:{17+4*j}], v[84:85]")
    for j in range(8):
        a(f"v_pk_fma_f32 v[{16+4*j}:{17+4*j}], v[{18+4*j}:{19+4*j}], v[86:87], v[{16+4*j}:{17+4*j}]")
    for j in range(8):
        a(f"v_add_f32 v{48+j}, v{16+4*j}, v{17+4*j}")
    a("""
    v_permlane16_swap_b32 v48, v50
    v_permlane16_swap_b32 v49, v51
    v_permlane16_swap_b32 v52, v54
    v_permlane16_swap_b32 v53, v55
    v_add_f32 v48, v48, v50
    v_add_f32 v52, v52, v54
    v_add_f32 v49, v49, v51
    v_add_f32 v53, v53, v55
    v_permlane32_swap_b32 v48, v52
    s_nop 0
    v_permlane32_swap_b32 v49, v53
    v_add_f32 v48, v48, v52
    v_add_f32 v49, v49, v53
    """)
    a(f"ds_write_b64 v8, v[48:49] offset:{YPART}")
    g.arrive(C6, rtn="v2")
    a("""
    s_waitcnt lgkmcnt(0)
    v_cmp_ne_u32 vcc, 3, v2
    s_mov_b64 exec, -1
    s_cbranch_vccnz L_Qend
    s_mov_b32 exec_hi, 0
    """)
    for p in range(4):
        a(f"ds_read_b128 v[{16+4*p}:{19+4*p}], v6 offset:{YPART+512*p}")
    a(f"""
    s_waitcnt lgkmcnt(2)
    v_pk_add_f32 v[16:17], v[16:17], v[20:21]
    v_pk_add_f32 v[18:19], v[18:19], v[22:23]
    s_waitcnt lgkmcnt(0)
    v_pk_add_f32 v[24:25], v[24:25], v[28:29]
    v_pk_add_f32 v[26:27], v[26:27], v[30:31]
    v_pk_add_f32 v[16:17], v[16:17], v[24:25]
    v_pk_add_f32 v[18:19], v[18:19], v[26:27]
    v_min_u32 v16, -2, v16
    v_min_u32 v17, -2, v17
    v_min_u32 v18, -2, v18
    v_min_u32 v19, -2, v19
    global_store_dwordx4 v6, v[16:19], s[36:37] offset:{BY} sc1
    """)
    g.stamp(8)
    g.flush_stamps([(8, 9)])
    a("L_Qend:")
    if stamps:
        a("s_cmp_lg_u32 s6, 0\ns_cbranch_scc1 L_end")
        g.flush_stamps([(0, 0), (1, 1), (2, 2), (5, 5), (6, 6), (7, 7)])
    a("s_endpgm")

    a(f"""
L_K2:
    s_mov_b32 s44, 0x11111111
    s_mov_b32 s45, 0x11111111
    s_lshl_b64 s[46:47], s[44:45], 1
    s_lshl_b64 s[48:49], s[44:45], 2
    s_lshl_b64 s[50:51], s[44:45], 3
    v_lshlrev_b32 v11, 2, v8
    v_lshrrev_b32 v2, 1, v10
    v_lshlrev_b32 v5, 8, v2
    v_lshl_add_u32 v5, v9, 6, v5
    v_lshl_add_u32 v5, v8, 4, v5
    v_and_b32 v2, 1, v10
    v_lshl_add_u32 v5, v2, 3, v5
    s_lshl_b32 s8, s6, 9
    v_add_u32 v5, s8, v5
    v_lshlrev_b32 v100, 6, v8
    v_lshl_add_u32 v100, v9, 2, v100
    s_lshl_b32 s8, s6, 4
    v_add_u32 v100, s8, v100
    s_lshl_b32 s8, s6, 2
    v_mov_b32 v101, s8
    v_lshrrev_b32 v2, 5, v1
    v_and_b32 v102, 31, v1
    v_lshlrev_b32 v102, 4, v102
    v_lshl_add_u32 v102, v2, 10, v102
    v_lshlrev_b32 v103, 2, v1
    s_lshl_b32 s8, s6, 8
    v_add_u32 v103, s8, v103
    s_lshl_b32 s8, s3, 13
    s_lshl_b32 s9, s6, 11
    s_add_u32 s8, s8, s9
    s_add_u32 s8, s8, {HOP1}
    s_add_u32 s38, s30, s8
    s_addc_u32 s39, s31, 0
    s_waitcnt lgkmcnt(0)
    s_add_u32 s11, s11, 0x9E3779B9
    s_setprio 3
    """)
    if hint:
        a("""
    s_movk_i32 s42, 200
L_hint_loop:
    s_load_dword s56, s[38:39], 508 glc
    s_load_dword s57, s[38:39], 1020 glc
    s_load_dword s58, s[38:39], 1532 glc
    s_load_dword s59, s[38:39], 2044 glc
    s_sub_u32 s42, s42, 1
    s_cbranch_scc1 L_hint_done
    s_waitcnt lgkmcnt(0)
    s_xor_b32 s56, s56, s11
    s_xor_b32 s57, s57, s11
    s_xor_b32 s58, s58, s11
    s_xor_b32 s59, s59, s11
    s_or_b32 s56, s56, s57
    s_or_b32 s58, s58, s59
    s_or_b32 s56, s56, s58
    s_cbranch_scc1 L_hint_loop
L_hint_done:
        """)
    g.stamp(6)
    a("""
    s_mov_b32 s42, 0x40000
L_Qpoll_loop:
    global_load_dwordx4 v[84:87], v102, s[38:39] sc1
    global_load_dwordx4 v[88:91], v102, s[38:39] offset:512 sc1
    s_sub_u32 s42, s42, 1
    s_cbranch_scc1 L_Qpoll_done
    s_waitcnt vmcnt(0)
    v_xor_b32 v92, s11, v85
    v_xor_b32 v93, s11, v87
    v_xor_b32 v94, s11, v89
    v_xor_b32 v95, s11, v91
    v_or3_b32 v92, v92, v93, v94
    v_or_b32 v92, v92, v95
    v_cmp_ne_u32 vcc, 0, v92
    s_cbranch_vccnz L_Qpoll_loop
L_Qpoll_done:
    v_add_f32 v84, v84, v88
    v_add_f32 v86, v86, v90
    v_cvt_pk_bf16_f32 v84, v84, v86
    """)
    a(f"ds_write_b32 v103, v84 offset:{QLDS}")
    g.arrive(C2)
    g.stamp(7)
    g.lds_spin(C2, 4)
    g.stamp(2)
    a(f"ds_read_b128 v[80:83], v4 offset:{QLDS}")
    a("s_waitcnt vmcnt(0) lgkmcnt(0)")
    for i in range(16):
        a(f"v_mfma_f32_16x16x32_bf16 v[{12+4*i}:{15+4*i}], v[{16+4*i}:{19+4*i}], v[80:83], 0")
    for q in range(4):
        for rho in range(4):
            for e in range(4):
                i = 4*q + e
                d = 12 + 4*i + rho
                if rho == 0: a(f"v_mov_b32_dpp v{84+i}, v{d} quad_perm:[0,0,0,0] {DPPALL}")
                else: a(f"v_add_f32_dpp v{84+i}, v{d}, v{84+i} quad_perm:[{rho},{rho},{rho},{rho}] {DPPALL}")
    for vv in range(1, 4):
        for e in range(4):
            a(f"v_cndmask_b32 v{84+e}, v{84+e}, v{84+4*vv+e}, s[{44+2*vv}:{45+2*vv}]")
    a(f"""
    v_cvt_pk_bf16_f32 v88, v84, v85
    v_cvt_pk_bf16_f32 v89, v86, v87
    v_lshlrev_b32 v84, 16, v88
    v_and_b32 v85, 0xffff0000, v88
    v_lshlrev_b32 v86, 16, v89
    v_and_b32 v87, 0xffff0000, v89
    v_mul_f32 v84, 0x3db504f3, v84
    v_mul_f32 v85, 0x3db504f3, v85
    v_mul_f32 v86, 0x3db504f3, v86
    v_mul_f32 v87, 0x3db504f3, v87
    v_cvt_pk_bf16_f32 v88, v84, v85
    v_cvt_pk_bf16_f32 v89, v86, v87
    v_lshlrev_b32 v84, 16, v88
    v_and_b32 v85, 0xffff0000, v88
    v_lshlrev_b32 v86, 16, v89
    v_and_b32 v87, 0xffff0000, v89
    v_max3_f32 v88, v84, v85, v86
    v_max_f32 v88, v88, v87
    s_nop 1
    v_max_f32_dpp v88, v88, v88 quad_perm:[1,0,3,2] {DPPALL}
    s_nop 1
    v_max_f32_dpp v88, v88, v88 quad_perm:[2,3,0,1] {DPPALL}
    s_mov_b64 exec, s[44:45]
    ds_max_f32 v11, v88 offset:{MMAX}
    """)
    g.arrive(C3)
    g.lds_spin(C3, 4)
    a(f"""
    ds_read_b32 v88, v11 offset:{MMAX}
    s_mov_b32 s8, 0x3fb8aa3b
    s_waitcnt lgkmcnt(0)
    v_sub_f32 v84, v84, v88
    v_sub_f32 v85, v85, v88
    v_sub_f32 v86, v86, v88
    v_sub_f32 v87, v87, v88
    v_mul_f32 v84, s8, v84
    v_mul_f32 v85, s8, v85
    v_mul_f32 v86, s8, v86
    v_mul_f32 v87, s8, v87
    v_exp_f32 v84, v84
    v_exp_f32 v85, v85
    v_exp_f32 v86, v86
    v_exp_f32 v87, v87
    s_nop 0
    v_cvt_pk_bf16_f32 v90, v84, v85
    v_cvt_pk_bf16_f32 v91, v86, v87
    ds_write_b64 v5, v[90:91] offset:{PLDS}
    ds_write_b32 v101, v7 offset:{PFLAG}
    v_add_f32 v84, v84, v85
    v_add_f32 v86, v86, v87
    v_add_f32 v84, v84, v86
    s_nop 1
    v_add_f32_dpp v84, v84, v84 quad_perm:[1,0,3,2] {DPPALL}
    s_nop 1
    v_add_f32_dpp v84, v84, v84 quad_perm:[2,3,0,1] {DPPALL}
    s_mov_b64 exec, s[44:45]
    ds_write_b32 v100, v84 offset:{LSUM}
    """)
    g.arrive(C4, rtn="v2")
    g.stamp(4)
    a(f"""
    s_lshl_b32 s8, s10, 12
    s_add_u32 s8, s8, {BOX}
    s_add_u32 s36, s30, s8
    s_addc_u32 s37, s31, 0
    s_waitcnt lgkmcnt(0)
    v_cmp_ne_u32 vcc, 3, v2
    s_mov_b64 exec, -1
    s_cbranch_vccnz L_Kpost
    s_mov_b64 exec, 15
    v_lshlrev_b32 v2, 6, v1
    v_lshlrev_b32 v4, 2, v1
    ds_read_b128 v[16:19], v2 offset:{LSUM}
    ds_read_b128 v[20:23], v2 offset:{LSUM+16}
    ds_read_b128 v[24:27], v2 offset:{LSUM+32}
    ds_read_b128 v[28:31], v2 offset:{LSUM+48}
    ds_read_b32 v32, v4 offset:{MMAX}
    v_lshlrev_b32 v4, 3, v1
    s_waitcnt lgkmcnt(0)
    v_pk_add_f32 v[16:17], v[16:17], v[18:19]
    v_pk_add_f32 v[20:21], v[20:21], v[22:23]
    v_pk_add_f32 v[24:25], v[24:25], v[26:27]
    v_pk_add_f32 v[28:29], v[28:29], v[30:31]
    v_pk_add_f32 v[16:17], v[16:17], v[20:21]
    v_pk_add_f32 v[24:25], v[24:25], v[28:29]
    v_pk_add_f32 v[16:17], v[16:17], v[24:25]
    v_add_f32 v33, v16, v17
    v_min_u32 v32, -2, v32
    v_min_u32 v33, -2, v33
    global_store_dwordx2 v4, v[32:33], s[36:37] offset:{BM} sc1
    s_mov_b64 exec, -1
L_Kpost:
    """)
    if stamps:
        a("s_cmp_lg_u32 s6, 3\ns_cbranch_scc1 L_Kp2")
        g.flush_stamps([(1, 10), (6, 8), (7, 4), (2, 11), (4, 13)])
        a("L_Kp2:")
    a(f"""
    s_cmp_eq_u32 s6, 0
    s_cbranch_scc1 L_F1
    s_cmp_lg_u32 s6, 1
    s_cbranch_scc1 L_end
    s_lshl_b32 s8, s3, 16
    s_lshr_b32 s9, s4, 2
    s_lshl_b32 s9, s9, 3
    s_add_u32 s8, s8, s9
    s_add_u32 s8, s8, {BOX+BM}
    s_add_u32 s38, s30, s8
    s_addc_u32 s39, s31, 0
    v_and_b32 v5, 15, v1
    v_lshlrev_b32 v4, 12, v5
    v_lshlrev_b32 v5, 2, v5
    s_mov_b64 exec, 0xffff
    s_mov_b32 s42, 0x40000
L_Mpoll_loop:
    global_load_dwordx2 v[16:17], v4, s[38:39] sc1
    s_sub_u32 s42, s42, 1
    s_cbranch_scc1 L_Mpoll_done
    s_waitcnt vmcnt(0)
    v_max_u32 v2, v16, v17
    v_cmp_eq_u32 vcc, -1, v2
    s_cbranch_vccnz L_Mpoll_loop
L_Mpoll_done:
    v_mov_b32 v18, v16
    s_mov_b32 s8, 0x3fb8aa3b
    """)
    for r in (8, 4, 2, 1):
        a(f"s_nop 1\nv_max_f32_dpp v18, v18, v18 row_ror:{r} {DPPALL}")
    a("""
    v_sub_f32 v16, v16, v18
    v_mul_f32 v16, s8, v16
    v_exp_f32 v16, v16
    s_nop 0
    v_mul_f32 v17, v16, v17
    """)
    for r in (8, 4, 2, 1):
        a(f"s_nop 1\nv_add_f32_dpp v17, v17, v17 row_ror:{r} {DPPALL}")
    a(f"""
    v_rcp_f32 v17, v17
    s_nop 0
    v_mul_f32 v16, v16, v17
    ds_write_b32 v5, v16 offset:{FVEC}
    ds_write_b32 v3, v7 offset:{FFLAG}
    """)
    g.stamp(5)
    g.flush_stamps([(5, 14)])
    a("s_endpgm")
    a(f"""
L_F1:
    s_cmp_ge_u32 s2, 128
    s_cbranch_scc1 L_end
    s_lshr_b32 s8, s2, 5
    s_lshl_b32 s9, s8, 9
    s_add_u32 s9, s9, {HOP1}
    s_add_u32 s38, s30, s9
    s_addc_u32 s39, s31, 0
    s_lshl_b32 s9, s8, 12
    s_and_b32 s8, s2, 31
    s_lshl_b32 s8, s8, 4
    s_add_u32 s9, s9, s8
    s_add_u32 s9, s9, {BOX+BY}
    s_add_u32 s36, s30, s9
    s_addc_u32 s37, s31, 0
    v_lshlrev_b32 v4, 11, v1
    v_lshlrev_b32 v5, 14, v1
    global_load_dwordx4 v[16:19], v6, s[20:21]
    global_load_dwordx4 v[20:23], v6, s[24:25]
    s_mov_b32 s42, 0x40000
L_Cpoll_loop:
    global_load_dword v2, v4, s[38:39] offset:4 sc1
    s_sub_u32 s42, s42, 1
    s_cbranch_scc1 L_Cpoll_done
    s_waitcnt vmcnt(0)
    v_cmp_ne_u32 vcc, s11, v2
    s_cbranch_vccnz L_Cpoll_loop
L_Cpoll_done:
    s_waitcnt vmcnt(0)
    """)
    for k in range(4):
        a(f"""
    v_lshlrev_b32 v24, 16, v{16+k}
    v_and_b32 v25, 0xffff0000, v{16+k}
    v_lshlrev_b32 v26, 16, v{20+k}
    v_and_b32 v27, 0xffff0000, v{20+k}
    v_mul_f32 v24, v24, v26
    v_mul_f32 v25, v25, v27
    v_cvt_pk_bf16_f32 v24, v24, v25
    v_lshlrev_b32 v{28+2*k}, 16, v24
    v_and_b32 v{29+2*k}, 0xffff0000, v24
        """)
    a("""
    v_pk_add_f32 v[28:29], v[28:29], v[30:31]
    v_pk_add_f32 v[32:33], v[32:33], v[34:35]
    v_pk_add_f32 v[28:29], v[28:29], v[32:33]
    v_add_f32 v28, v28, v29
    """)
    for r in (8, 4, 2, 1):
        a(f"s_nop 1\nv_add_f32_dpp v28, v28, v28 row_ror:{r} {DPPALL}")
    a("""
    v_mov_b32 v29, v28
    s_nop 1
    v_permlane16_swap_b32 v28, v29
    v_add_f32 v28, v28, v29
    v_mov_b32 v29, v28
    s_nop 1
    v_permlane32_swap_b32 v28, v29
    v_add_f32 v28, v28, v29
    v_cvt_pk_bf16_f32 v28, v28, v28
    v_lshlrev_b32 v28, 16, v28
    v_mul_f32 v28, 0xbfb8aa3b, v28
    v_exp_f32 v28, v28
    s_nop 0
    v_add_f32 v28, 1.0, v28
    v_rcp_f32 v28, v28
    s_nop 0
    v_cvt_pk_bf16_f32 v28, v28, v28
    v_lshlrev_b32 v28, 16, v28
    v_sub_f32 v29, 1.0, v28
    v_cvt_pk_bf16_f32 v29, v29, v29
    v_lshlrev_b32 v29, 16, v29
    v_cmp_gt_u32 vcc, 32, v1
    v_lshrrev_b32 v2, 4, v1
    s_lshl_b32 s8, s2, 3
    v_cndmask_b32 v28, v29, v28, vcc
    v_lshlrev_b32 v2, 1, v2
    v_add_u32 v30, s8, v2
    """)
    g.lds_spin(C6, 4, sleep=1)
    a("s_mov_b32 s42, 0x40000")
    g.stamp(6)
    a("""
L_Ypoll_loop:
    global_load_dwordx4 v[16:19], v5, s[36:37] sc1
    s_sub_u32 s42, s42, 1
    s_cbranch_scc1 L_Ypoll_done
    s_waitcnt vmcnt(0)
    v_max3_u32 v2, v16, v17, v18
    v_max_u32 v2, v2, v19
    v_cmp_eq_u32 vcc, -1, v2
    s_cbranch_vccnz L_Ypoll_loop
L_Ypoll_done:
    """)
    g.stamp(7)
    for r in (8, 4, 2, 1):
        for k in range(4):
            a(f"v_add_f32_dpp v{16+k}, v{16+k}, v{16+k} row_ror:{r} {DPPALL}")
    a("""
    s_nop 0
    v_permlane16_swap_b32 v16, v17
    v_permlane16_swap_b32 v18, v19
    v_add_f32 v16, v16, v17
    v_add_f32 v18, v18, v19
    v_cvt_pk_bf16_f32 v16, v16, v18
    v_lshlrev_b32 v17, 16, v16
    v_and_b32 v18, 0xffff0000, v16
    v_mul_f32 v17, v28, v17
    v_mul_f32 v18, v28, v18
    v_cvt_pk_bf16_f32 v16, v17, v18
    v_mov_b32 v17, v16
    s_nop 1
    v_permlane32_swap_b32 v16, v17
    v_lshlrev_b32 v18, 16, v16
    v_and_b32 v19, 0xffff0000, v16
    v_lshlrev_b32 v20, 16, v17
    v_and_b32 v21, 0xffff0000, v17
    v_add_f32 v18, v18, v20
    v_add_f32 v19, v19, v21
    v_cvt_pk_bf16_f32 v16, v18, v19
    s_mov_b64 exec, 0x10001
    global_store_short v30, v16, s[26:27]
    global_store_short_d16_hi v30, v16, s[26:27] offset:4
    """)
    g.stamp(8)
    g.flush_stamps([(6, 21), (7, 22), (8, 23)])
    a("""
    s_cmp_lg_u32 s2, 0
    s_cbranch_scc1 L_end
    v_mov_b32 v2, s11
    global_store_dword v3, v2, s[30:31]
L_end:
    s_endpgm
    """)
    mk = lambda b: wrap(b, 768, LDS_BYTES, 152, 96)
    if touch:
        body, n = insert_stubs(g.L, mk)
    else:
        body = g.L
    return mk(body)

if __name__ == "__main__":
    from build import build
    cfgs = {
      "v2a": dict(),
      "v2a_s": dict(stamps=True),
      "v2b_s": dict(stamps=True, hint=0),
      "v2c_s": dict(stamps=True, fast2=1),
      "v2d_s": dict(stamps=True, kvmap="w"),
      "v2e_s": dict(stamps=True, touch=0),
    }
    for n, c in cfgs.items():
        p = f"bench/{n}.s"
        open(p, "w").write(gen(**c)); build(p)
    print(" ".join(f"-v {n}.co:256:768:16384" for n in cfgs))
    print(", ".join(f'"bench/{n}.co"' for n in cfgs))
```

```python
import re, sys
from asmlib import *
import gen2
from build import build
def mk(name, k, mult, **kw):
    s = gen2.gen(stamps=True, **kw)
    tail = f"""L_Qend:
    s_cmp_lg_u32 s6, 0
    s_cbranch_scc1 L_end
    s_cmp_lg_u32 s2, 0
    s_cbranch_scc1 L_end
    s_waitcnt lgkmcnt(0)
    s_sub_u32 s8, s{64+2*k}, s64
    v_mov_b32 v2, s8
    global_store_dword v3, v2, s[28:29]
    s_mul_i32 s8, s8, {mult}
    s_add_u32 s8, s8, 2500
L_diag:
    s_memrealtime s[94:95]
    s_waitcnt lgkmcnt(0)
    s_sub_u32 s9, s94, s64
    s_cmp_lt_u32 s9, s8
    s_cbranch_scc1 L_diag
    s_endpgm
"""
    assert "L_Qend:\n" in s
    s = s.replace("L_Qend:\n", tail)
    open(f"bench/{name}.s","w").write(s); build(f"bench/{name}.s")
mk("e_base", 1, 0, fast2=1)
mk("e_s1", 1, 20, fast2=1)
mk("e_s2", 2, 10, fast2=1)
mk("e_s6", 6, 4, fast2=1)
mk("e_s7", 7, 4, fast2=1)
open("v2c.s","w").write(gen2.gen(fast2=1)); build("v2c.s")
```

```python
import sys
from asmlib import *

H1 = 0x10000
OA = 0x80000
MA = 0x100000
YB = 0x140000
PB = 0x180000
VT = 0x110000
STAMP = 512 << 20
C1, C2, C3, C4, C5, C6, NONLOC, CV, CCLR, QPUB, OPUB = 0, 4, 8, 12, 16, 20, 24, 28, 48, 52, 56
PFLAG = 32
CRQ, CRK, CRV = 64, 80, 96
MMAX = 0x80
FVEC = 0xC0
LSUM = 0x100
QLDS = 0x200
H1LDS = 0x600
PLDS = 0x800
QPART = 0x1000
YPART = 0x1800
OPART = 0x2000
LDS_BYTES = 0x4000
DPPALL = "row_mask:0xf bank_mask:0xf"
TAGC = "0x9E3779B9"

class G:
    def __init__(self, stamps):
        self.sec = {k: [] for k in ("start", "vpre", "kiss", "q2", "viss", "k2", "wo", "v2", "fin", "prb")}
        self.hot = self.sec["start"]; self.cold = []; self.L = self.hot; self.stamps = stamps; self.nlab = 0
    def a(self, s):
        for ln in s.strip("\n").split("\n"):
            t = ln.strip()
            if not t: continue
            self.L.append(t if t.endswith(":") else "    " + t)
    def lab(self, p="L"):
        self.nlab += 1; return f"{p}_{self.nlab}"
    def stamp(self, k):
        if self.stamps: self.a(f"s_memrealtime s[{64+2*k}:{65+2*k}]")
    def end(self):
        self.a("s_branch L_flush" if self.stamps else "s_endpgm")
    def lds_spin(self, off, val, vaddr0="v3", tmp="v2", sleep=0, add=None):
        l = self.lab("Lspin")
        self.a(f"{l}:")
        if sleep: self.a(f"s_sleep {sleep}")
        self.a(f"ds_read_b32 {tmp}, {vaddr0} offset:{off}")
        self.a("s_sub_u32 s42, s42, 1")
        self.a(f"s_cbranch_scc1 L_end")
        self.a("s_waitcnt lgkmcnt(0)")
        if add: self.a(f"v_add_u32 {tmp}, {add}, {tmp}")
        self.a(f"v_cmp_gt_u32 vcc, {val}, {tmp}")
        self.a(f"s_cbranch_vccnz {l}")
    def arrive(self, off, rtn=None, vz="v3", one="v7"):
        self.a("s_mov_b64 exec, 1")
        if rtn: self.a(f"ds_add_rtn_u32 {rtn}, {vz}, {one} offset:{off}")
        else:
            self.a(f"ds_add_u32 {vz}, {one} offset:{off}")
            self.a("s_mov_b64 exec, -1")
    def signal(self, off, val, vaddr, tmp="v2"):
        self.a(f"v_mov_b32 {tmp}, {val}\nds_write_b32 {vaddr}, {tmp} offset:{off}")

def gen(stamps=False, LK0=10, LK=6, LV=6, LV2=12, LVS=6, ogate=1, o64=0, two=0, ydup=2, ystart=1, boost=0, boostv=0, boosto=0, prio=1, LW=0, touch=1, forcenl=0, qdelay=0, scatter=0, qpipe=0, wogate=1, repub=60):
    g = G(stamps); a = g.a
    XM = 0x11000
    if ydup is None:
        YP = "s_lshl_b32 s23, s10, 7\ns_and_b32 s23, s23, 0x7e00\ns_add_u32 s8, s8, s23"
        YW = "s_mov_b32 exec_hi, 0\nglobal_load_dwordx4 v[12:15], v6, s[40:41]\ns_mov_b32 exec_hi, -1"
    else:
        YP = "s_lshl_b32 s23, s10, 7\ns_and_b32 s23, s23, 0x1e00\ns_add_u32 s8, s8, s23\ns_lshr_b32 s23, s10, 6\ns_lshl_b32 s23, s23, 14\ns_add_u32 s8, s8, s23"
        YW = "v_and_b32 v12, 0x1f0, v6\nv_lshrrev_b32 v13, 5, v1\nv_lshl_add_u32 v12, v13, 13, v12\nglobal_load_dwordx4 v[12:15], v12, s[40:41]"
    YSEL = "" if ydup in (None, 2) else f"s_getreg_b32 s8, hwreg(HW_REG_XCC_ID, 2, 1)\ns_xor_b32 s8, s8, {ydup}\ns_lshl_b32 s8, s8, 13\ns_add_u32 s9, s9, s8"
    YR = "v_lshlrev_b32 v5, 9, v1" if ydup is None else "v_and_b32 v5, 15, v1\nv_lshlrev_b32 v5, 9, v5\nv_lshrrev_b32 v2, 4, v1\nv_lshl_add_u32 v5, v2, 14, v5"
    BOOST = f"s_lshr_b32 s23, s4, 1\ns_cmp_eq_u32 s23, 3\ns_cselect_b32 s55, {boost}, 0\ns_cselect_b32 s58, {boostv}, 0" if (boost or boostv) else ""
    EXIT = "L_flush" if stamps else "L_end"
    if stamps:
        for k in range(1, 12): a(f"s_mov_b64 s[{64+2*k}:{65+2*k}], 0")
    g.stamp(0)
    if scatter:
        a("s_cmp_ge_u32 s2, 256\ns_cbranch_scc1 L_end\ns_mul_i32 s2, s2, 37\ns_lshr_b32 s8, s2, 3\ns_and_b32 s8, s8, 31\ns_and_b32 s2, s2, 7\ns_lshl_b32 s2, s2, 5\ns_or_b32 s2, s2, s8")
    a("""
    s_and_b32 s8, s2, 8
    s_mul_i32 s8, s8, 5
    s_add_u32 s8, s0, s8
    s_addc_u32 s9, s1, 0
    s_load_dwordx8 s[12:19], s[8:9], 8
    s_load_dwordx2 s[20:21], s[0:1], 0
    s_load_dwordx8 s[24:31], s[0:1], 80
    s_cmp_ge_u32 s2, 256
    s_cbranch_scc1 L_end
    v_lshrrev_b32 v2, 6, v0
    v_and_b32 v1, 63, v0
    v_readfirstlane_b32 s7, v2
    s_and_b32 s3, s2, 15
    s_lshr_b32 s4, s2, 4
    s_and_b32 s5, s2, 7
    s_lshl_b32 s10, s3, 4
    s_add_u32 s10, s10, s4
    s_and_b32 s6, s7, 3
    """)
    if touch:
        a("s_cmp_lt_u32 s7, 8\ns_cbranch_scc1 L_touch_ret")
        for w in range(3): a(f"s_cmp_eq_u32 s7, {8+w}\ns_cbranch_scc1 L_stub_{w}")
        a("s_branch L_stub_3\nL_touch_ret:")
    a("""
    s_lshr_b32 s7, s7, 2
    s_mov_b32 s42, 0x200000
    s_lshl_b32 s8, s6, 2
    v_mov_b32 v3, 0
    v_mov_b32 v7, 1
    v_lshlrev_b32 v6, 4, v1
    v_mov_b32 v0, s8
    s_cmp_lg_u32 s7, 0
    s_cbranch_scc1 L_notQ
    """)
    a("""
    s_setprio 3
    v_lshrrev_b32 v2, 3, v1
    v_and_b32 v5, 7, v1
    v_lshlrev_b32 v4, 16, v2
    v_lshl_add_u32 v4, v5, 4, v4
    v_lshlrev_b32 v5, 4, v2
    s_and_b32 s22, s4, 1
    s_lshl_b32 s22, s22, 2
    s_add_u32 s22, s22, s6
    s_lshl_b32 s23, s22, 19
    s_lshl_b32 s22, s22, 7
    s_lshl_b32 s8, s5, 10
    s_add_u32 s23, s23, s8
    s_lshr_b32 s8, s4, 1
    s_lshl_b32 s8, s8, 7
    s_add_u32 s23, s23, s8
    s_movk_i32 s9, 0x2000
    s_waitcnt lgkmcnt(0)
    s_add_u32 s34, s20, s22
    s_addc_u32 s35, s21, 0
    s_add_u32 s16, s16, s23
    s_addc_u32 s17, s17, 0
    global_load_dwordx4 v[12:15], v5, s[34:35]
    """)
    for i in range(8):
        a(f"global_load_dwordx4 v[{16+4*i}:{19+4*i}], v4, s[16:17] nt")
        if i < 7: a("v_add_u32 v4, s9, v4")
    a("s_load_dword s11, s[30:31], 0")
    a("s_barrier")
    g.stamp(1)
    a("s_branch L_Q2")
    g.L = g.sec["q2"]
    a("L_Q2:")
    a("""
    v_and_b32 v2, 1, v1
    v_lshlrev_b32 v2, 4, v2
    v_mov_b32 v4, 0xffff
    v_lshlrev_b32 v4, v2, v4
    v_bfe_u32 v2, v1, 1, 2
    s_mov_b32 s52, 0x01000100
    s_mov_b32 s53, 0x03020302
    s_getreg_b32 s43, hwreg(HW_REG_XCC_ID, 0, 3)
    """)
    if forcenl: a("s_bfe_u32 s43, s2, 0x30004")
    for r in range(4):
        a(f"v_cmp_eq_u32 vcc, {r}, v2\ns_nop 1\nv_cndmask_b32 v{80+r}, 0, v4, vcc")
    a(f"""
    v_lshrrev_b32 v2, 5, v1
    v_lshlrev_b32 v5, 8, v2
    v_and_b32 v88, 31, v1
    v_lshlrev_b32 v88, 4, v88
    v_lshl_add_u32 v88, v2, 10, v88
    v_and_b32 v2, 7, v1
    v_lshl_add_u32 v5, v2, 5, v5
    v_and_b32 v2, 16, v1
    v_add_u32 v5, v5, v2
    s_lshl_b32 s8, s6, 9
    v_add_u32 v5, s8, v5
    v_lshlrev_b32 v89, 2, v1
    s_lshl_b32 s8, s6, 8
    v_add_u32 v89, s8, v89
    s_mov_b32 s44, 0x00ff00ff
    s_mov_b32 s45, 0xff00ff00
    s_lshl_b32 s8, s10, 9
    s_add_u32 s8, s8, {H1}
    s_add_u32 s36, s30, s8
    s_addc_u32 s37, s31, 0
    s_lshl_b32 s8, s3, 13
    s_lshl_b32 s9, s6, 11
    s_add_u32 s8, s8, s9
    s_add_u32 s8, s8, {H1}
    s_add_u32 s38, s30, s8
    s_addc_u32 s39, s31, 0
    s_waitcnt vmcnt(8) lgkmcnt(0)
    s_add_u32 s11, s11, {TAGC}
    """)
    for i in range(8):
        a(f"v_perm_b32 v2, v{12+i//2}, v{12+i//2}, s{52+i%2}")
        for r in range(4):
            a(f"v_and_b32 v{48+4*i+r}, v2, v{80+r}")
    a("v_mov_b32 v9, s11\nv_mov_b32 v11, s11\nv_lshlrev_b32 v4, 3, v1")
    for i in range(8):
        a(f"s_waitcnt vmcnt({7-i})")
        if i % 2 == 1: g.signal(CRQ, i+1, "v0")
        c = "0" if i == 0 else "v[84:87]"
        a(f"v_mfma_f32_16x16x32_bf16 v[84:87], v[{48+4*i}:{51+4*i}], v[{16+4*i}:{19+4*i}], {c}")
    g.stamp(2)
    a(f"""
    s_mov_b64 exec, s[44:45]
    s_nop 6
    ds_write_b128 v5, v[84:87] offset:{QPART}
    """)
    g.arrive(C1, rtn="v2")
    a("s_mov_b32 exec_lo, -1")
    for p in range(4):
        a(f"ds_read_b64 v[{48+4*p}:{49+4*p}], v4 offset:{QPART+512*p}\nds_read_b64 v[{50+4*p}:{51+4*p}], v4 offset:{QPART+512*p+256}")
    a("""
    s_waitcnt lgkmcnt(8)
    v_readfirstlane_b32 s8, v2
    s_cmp_lg_u32 s8, 3
    s_cbranch_scc1 L_Qp_pre
    """)
    g.lds_spin(CCLR, 1)
    a(f"""
    v_pk_add_f32 v[48:49], v[48:49], v[50:51]
    v_pk_add_f32 v[52:53], v[52:53], v[54:55]
    v_pk_add_f32 v[56:57], v[56:57], v[58:59]
    v_pk_add_f32 v[60:61], v[60:61], v[62:63]
    v_pk_add_f32 v[48:49], v[48:49], v[52:53]
    v_pk_add_f32 v[56:57], v[56:57], v[60:61]
    v_add_f32 v8, v48, v56
    v_add_f32 v10, v49, v57
    v_and_or_b32 v8, v8, -8, s43
    global_store_dwordx4 v6, v[8:11], s[36:37]
    ds_write_b128 v6, v[8:11] offset:{H1LDS}
    ds_write_b32 v3, v7 offset:{QPUB}
    """)
    g.stamp(3)
    a("L_Qp_pre:\ns_mov_b64 exec, -1\ns_waitcnt lgkmcnt(0)")
    if qdelay: a(f"s_sleep {qdelay}")
    def qissue(r):
        a(f"global_load_dwordx4 v[{r}:{r+3}], v88, s[38:39] sc1\nglobal_load_dwordx4 v[{r+4}:{r+7}], v88, s[38:39] offset:512 sc1")
    def qcheck(r):
        a(f"""
    v_xor_b32 v72, s11, v{r+1}
    v_xor_b32 v73, s11, v{r+3}
    v_xor_b32 v74, s11, v{r+5}
    v_xor_b32 v75, s11, v{r+7}
    v_or3_b32 v72, v72, v73, v74
    v_or_b32 v72, v72, v75
    v_cmp_ne_u32 vcc, 0, v72""")
    if not qpipe:
        a("L_Qp_loop:"); qissue(48)
        a("s_sub_u32 s42, s42, 1\ns_cbranch_scc1 L_end\ns_waitcnt vmcnt(0)")
        qcheck(48); a("s_cbranch_vccnz L_Qp_loop")
    else:
        qissue(48); a(f"s_sleep {qpipe}")
        a("L_Qp_loop:"); qissue(56)
        a("s_sub_u32 s42, s42, 1\ns_cbranch_scc1 L_end\ns_waitcnt vmcnt(2)")
        qcheck(48); a("s_cbranch_vccz L_Qp_done")
        qissue(48)
        a("s_waitcnt vmcnt(2)")
        qcheck(56); a("s_cbranch_vccnz L_Qp_loop")
        a("v_mov_b32 v64, v56\nv_mov_b32 v65, v58\nv_mov_b32 v66, v60\nv_mov_b32 v67, v62\ns_branch L_Qp_done2")
        a("L_Qp_done:")
    a("v_mov_b32 v64, v48\nv_mov_b32 v65, v50\nv_mov_b32 v66, v52\nv_mov_b32 v67, v54" if qpipe else "")
    q0, q1, q2, q3 = (64, 65, 66, 67) if qpipe else (48, 50, 52, 54)
    if qpipe: a("L_Qp_done2:")
    a(f"""
    v_xor_b32 v72, s43, v{q0}
    v_xor_b32 v73, s43, v{q2}
    v_and_b32 v{q0}, -8, v{q0}
    v_and_b32 v{q2}, -8, v{q2}
    v_add_f32 v74, v{q0}, v{q2}
    v_add_f32 v75, v{q1}, v{q3}
    v_or_b32 v72, v72, v73
    v_cvt_pk_bf16_f32 v74, v74, v75
    v_and_b32 v72, 7, v72
    ds_write_b32 v89, v74 offset:{QLDS}
    v_cmp_ne_u32 vcc, 0, v72
    s_cbranch_vccz L_loc
    ds_write_b32 v3, v7 offset:{NONLOC}
L_loc:
    """)
    g.arrive(C2)
    g.stamp(4)
    a("s_branch L_W0")
    g.L = g.sec["wo"]
    a("L_W0:")
    def perm_pair(src, dst, t):
        for r in range(4):
            s1 = src + 8*t + r; s0 = src + 8*t + 4 + r
            a(f"v_perm_b32 v{dst+4*(2*r)+t}, v{s0}, v{s1}, s52")
            a(f"v_perm_b32 v{dst+4*(2*r+1)+t}, v{s0}, v{s1}, s53")
    a(f"""
    s_lshl_b32 s8, s5, 19
    s_lshr_b32 s9, s4, 2
    s_lshl_b32 s22, s9, 17
    s_add_u32 s8, s8, s22
    s_lshl_b32 s22, s6, 15
    s_add_u32 s8, s8, s22
    s_and_b32 s23, s4, 3
    s_lshl_b32 s22, s23, 8
    s_add_u32 s8, s8, s22
    s_add_u32 s8, s8, 4096
    s_add_u32 s34, s18, s8
    s_addc_u32 s35, s19, 0
    v_lshrrev_b32 v2, 4, v1
    v_and_b32 v5, 15, v1
    v_lshlrev_b32 v4, 13, v2
    v_lshl_add_u32 v4, v5, 4, v4
    v_lshlrev_b32 v8, 5, v5
    v_lshl_add_u32 v8, v2, 3, v8
    v_lshlrev_b32 v5, {6 if o64 else 8}, v5
    v_lshl_add_u32 v5, v2, 4, v5
    v_lshlrev_b32 v9, 4, v2
    v_mov_b32 v10, 0xff800000
    v_and_b32 v13, 0x1f0, v6
    v_lshrrev_b32 v14, 5, v1
    v_lshl_add_u32 v14, v14, 13, v13
    s_lshl_b32 s8, s6, 9
    v_add_u32 v8, s8, v8
    s_lshl_b32 s8, s3, 14
    s_lshl_b32 s9, s9, 12
    s_add_u32 s8, s8, s9
    s_lshl_b32 s9, s6, {10 if o64 else 6}
    s_add_u32 s8, s8, s9
    s_add_u32 s8, s8, {OA}
    s_add_u32 s38, s30, s8
    s_addc_u32 s39, s31, 0
    s_lshl_b32 s8, s23, {15 if ydup is None else 16}
    {YP}
    s_add_u32 s8, s8, {YB}
    s_add_u32 s36, s30, s8
    s_addc_u32 s37, s31, 0
    s_mov_b32 s52, 0x05040100
    s_mov_b32 s53, 0x07060302
    s_mov_b32 s44, 0x07060500
    s_mov_b32 s45, 0x07060501
    s_mov_b32 s46, 0x07060502
    s_mov_b32 s47, 0x07060503
    """)
    if wogate: g.lds_spin(C2, 4, sleep=1)
    if not LW: g.lds_spin(CV, 4, sleep=1)
    if qpipe: a("s_waitcnt vmcnt(0)")
    for i in range(8):
        if LW and i % 2 == 0:
            need = 18 + i - LW
            if need <= 16: g.lds_spin(CRV, need, vaddr0="v0")
            else: a(f"s_waitcnt vmcnt({LW-2})")
        a(f"global_load_dwordx4 v[{16+4*i}:{19+4*i}], v4, s[34:35] offset:{i*1024-4096} nt")
    g.stamp(5)
    if not wogate: g.lds_spin(C2, 4, sleep=1)
    a(f"""
    ds_read_b32 v2, v3 offset:{NONLOC}
    s_waitcnt lgkmcnt(0)
    v_cmp_ne_u32 vcc, 0, v2
    s_cbranch_vccnz L_Wnl
L_Wloc:
    """)
    for t in range(3):
        a(f"s_waitcnt vmcnt({6-2*t})"); perm_pair(16, 48, t)
    if prio: a("s_setprio 0")
    if ogate: g.lds_spin(OPUB, 1)
    if prio: a("s_setprio 3")
    a("global_load_dwordx4 v[80:83], v5, s[38:39] sc1")
    if two:
        a(f"s_sleep {two}\nglobal_load_dwordx4 v[80:83], v5, s[38:39] sc1\ns_waitcnt vmcnt(2)"); perm_pair(16, 48, 3)
        a("""
    s_waitcnt vmcnt(1)
    v_max3_u32 v2, v80, v81, v82
    v_max_u32 v2, v2, v83
    v_cmp_eq_u32 vcc, -1, v2
    s_cbranch_vccz L_Op_done
        """)
    else:
        a("s_waitcnt vmcnt(1)"); perm_pair(16, 48, 3)
    g.stamp(6)
    a(f"""
L_Op_wait:
    s_waitcnt vmcnt(0)
    v_max3_u32 v2, v80, v81, v82
    v_max_u32 v2, v2, v83
    v_cmp_eq_u32 vcc, -1, v2
    s_cbranch_vccnz L_Op_loop
    s_mov_b64 exec, -1
L_Op_done:
    """)
    g.stamp(7)
    a(f"ds_read_b128 v[84:87], v9 offset:{FVEC}")
    for j in range(4):
        a(f"v_mfma_f32_16x16x32_bf16 v[{16+4*j}:{19+4*j}], v[80:83], v[{48+4*j}:{51+4*j}], 0")
    a(f"""
    s_nop 0
L_f_wait:
    s_waitcnt lgkmcnt(0)
    v_cmp_eq_u32 vcc, v10, v84
    s_cbranch_vccnz L_f_loop
    """)
    def sc(j, part):
        d = 16 + 4*j
        if part == 0: a(f"v_mul_f32 v{88+j}, v84, v{d}\nv_fmac_f32 v{88+j}, v85, v{d+1}")
        else: a(f"v_fmac_f32 v{88+j}, v86, v{d+2}\nv_fmac_f32 v{88+j}, v87, v{d+3}")
    for j in range(4, 8):
        a(f"v_mfma_f32_16x16x32_bf16 v[{16+4*j}:{19+4*j}], v[80:83], v[{48+4*j}:{51+4*j}], 0")
        sc(j-4, 0)
    for j in range(4): sc(j, 1)
    sc(4, 0)
    a("v_permlane16_swap_b32 v88, v90\nv_permlane16_swap_b32 v89, v91")
    sc(5, 0); sc(6, 0); sc(7, 0)
    a("v_add_f32 v88, v88, v90\nv_add_f32 v89, v89, v91")
    sc(4, 1); sc(6, 1); sc(5, 1); sc(7, 1)
    a(f"""
    v_permlane16_swap_b32 v92, v94
    s_nop 0
    v_permlane16_swap_b32 v93, v95
    v_add_f32 v92, v92, v94
    v_add_f32 v93, v93, v95
    s_nop 0
    v_permlane32_swap_b32 v88, v92
    v_permlane32_swap_b32 v89, v93
    v_add_f32 v88, v88, v92
    v_add_f32 v89, v89, v93
    ds_write_b64 v8, v[88:89] offset:{YPART}
    """)
    g.arrive(C6, rtn="v2")
    a("s_mov_b32 exec_lo, -1" if ydup is None else "s_mov_b64 exec, -1")
    for p in range(4):
        a(f"ds_read_b128 v[{16+4*p}:{19+4*p}], {'v6' if ydup is None else 'v13'} offset:{YPART+512*p}")
    a(f"""
    s_waitcnt lgkmcnt(4)
    v_readfirstlane_b32 s8, v2
    s_cmp_lg_u32 s8, 3
    s_cbranch_scc1 {EXIT}
    s_waitcnt lgkmcnt(2)
    v_pk_add_f32 v[16:17], v[16:17], v[20:21]
    v_pk_add_f32 v[18:19], v[18:19], v[22:23]
    s_waitcnt lgkmcnt(0)
    v_pk_add_f32 v[24:25], v[24:25], v[28:29]
    v_pk_add_f32 v[26:27], v[26:27], v[30:31]
    v_pk_add_f32 v[16:17], v[16:17], v[24:25]
    v_pk_add_f32 v[18:19], v[18:19], v[26:27]
    v_perm_b32 v16, v16, v11, s44
    v_perm_b32 v17, v17, v11, s45
    v_perm_b32 v18, v18, v11, s46
    v_perm_b32 v19, v19, v11, s47
    global_store_dwordx4 {'v6' if ydup is None else 'v14'}, v[16:19], s[36:37] sc1
    """)
    g.stamp(8)
    g.end()
    a(f"""
L_Op_loop:
    s_mov_b64 exec, vcc
    global_load_dwordx4 v[80:83], v5, s[38:39] sc1
    s_sub_u32 s42, s42, 1
    s_cbranch_scc0 L_Op_wait
    s_endpgm
L_f_loop:
    ds_read_b128 v[84:87], v9 offset:{FVEC}
    s_sub_u32 s42, s42, 1
    s_cbranch_scc0 L_f_wait
    s_endpgm
    """)
    g.L = g.cold
    a(f"""
L_Wnl:
    s_lshl_b32 s8, s3, 11
    s_add_u32 s8, s8, {MA}
    s_add_u32 s40, s30, s8
    s_addc_u32 s41, s31, 0
    v_and_b32 v12, 15, v1
    v_lshlrev_b32 v12, 7, v12
L_Wnl_loop:
    global_load_dword v2, v12, s[40:41] offset:64 sc1
    s_sub_u32 s42, s42, 1
    s_cbranch_scc1 L_end
    s_waitcnt vmcnt(0)
    v_cmp_ne_u32 vcc, s11, v2
    s_cbranch_vccnz L_Wnl_loop
    s_branch L_Wloc
    """)
    g.L = g.sec["start"]

    a(f"""
L_notQ:
    v_mov_b32 v4, 0xff800000
    v_cmp_gt_u32 vcc, 32, v1
    v_lshlrev_b32 v5, 2, v1
    s_lshl_b32 s22, s5, 24
    v_cndmask_b32 v4, v4, v3, vcc
    ds_write_b32 v5, v4
    s_lshl_b32 s9, s4, 12
    s_lshl_b32 s23, s6, 10
    s_add_u32 s9, s9, s23
    s_add_u32 s22, s22, {61440*256}
    s_mov_b32 s44, 0x11111111
    s_mov_b32 s45, 0x11111111
    s_lshl_b64 s[46:47], s[44:45], 1
    s_lshl_b64 s[48:49], s[44:45], 2
    s_lshl_b64 s[50:51], s[44:45], 3
    {BOOST}
    s_cmp_lg_u32 s7, 2
    s_cbranch_scc1 L_K0
    """)
    g.L = g.sec["kiss"]
    a("""
L_K0:
    s_setprio 2
    v_bfe_u32 v8, v1, 2, 2
    v_lshlrev_b32 v4, 8, v8
    v_lshrrev_b32 v9, 4, v1
    v_lshl_add_u32 v4, v9, 6, v4
    v_and_b32 v10, 3, v1
    v_lshl_add_u32 v4, v10, 4, v4
    v_add_u32 v11, s9, v4
    s_waitcnt lgkmcnt(0)
    s_add_u32 s34, s12, s22
    s_addc_u32 s35, s13, 0
    s_barrier
    s_load_dword s11, s[30:31], 0
    """)
    for p in range(8):
        i = 2*p
        need = 10 + i - LK
        a(f"v_xor_b32 v5, {XM*i}, v11\nv_xor_b32 v12, {XM*(i+1)}, v11")
        if 10 + i - LK0 <= 0: pass
        elif need <= 8: g.lds_spin(CRQ, need, vaddr0="v0", add="s55" if boost else None)
        else:
            if boost:
                l = g.lab("Lb")
                a(f"s_waitcnt vmcnt({LK-2+boost})\ns_cmp_lg_u32 s55, 0\ns_cbranch_scc1 {l}\ns_waitcnt vmcnt({LK-2})\n{l}:")
            else: a(f"s_waitcnt vmcnt({LK-2})")
            assert not (i + 2 - LK >= 18 - LV)
        a(f"global_load_dwordx4 v[{16+4*i}:{19+4*i}], v5, s[34:35] nt")
        a(f"global_load_dwordx4 v[{20+4*i}:{23+4*i}], v12, s[34:35] nt")
    g.stamp(1)
    a(f"""
    v_lshlrev_b32 v11, 2, v8
    v_lshrrev_b32 v2, 1, v10
    v_lshlrev_b32 v5, 8, v2
    v_lshl_add_u32 v5, v9, 6, v5
    v_lshl_add_u32 v5, v8, 4, v5
    v_and_b32 v2, 1, v10
    v_lshl_add_u32 v5, v2, 3, v5
    s_lshl_b32 s8, s6, 9
    v_add_u32 v5, s8, v5
    v_lshlrev_b32 v100, 6, v8
    v_lshl_add_u32 v100, v9, 2, v100
    s_lshl_b32 s8, s6, 4
    v_add_u32 v100, s8, v100
    s_lshl_b32 s8, s10, 7
    s_add_u32 s8, s8, {MA}
    s_add_u32 s36, s30, s8
    s_addc_u32 s37, s31, 0
    s_movk_i32 s54, {repub}
    s_mov_b32 s43, 0
    """)
    for c in range(max(18-LV-boostv, 2), 17, 2):
        a(f"s_waitcnt vmcnt({16-c})")
        g.signal(CRK, c, "v0")
    g.stamp(3)
    a("s_branch L_c2")
    g.L = g.sec["k2"]
    a(f"""
L_c2:
    s_sub_u32 s54, s54, 1
    s_cbranch_scc1 L_repub
    ds_read_b32 v2, v3 offset:{C2}
    s_sub_u32 s42, s42, 1
    s_cbranch_scc1 L_end
    s_waitcnt lgkmcnt(0)
    v_cmp_gt_u32 vcc, 4, v2
    s_cbranch_vccnz L_c2
    """)
    g.stamp(2)
    a(f"""
    ds_read_b128 v[80:83], v4 offset:{QLDS}
    ds_read_b32 v2, v3 offset:{NONLOC}
    s_add_u32 s11, s11, {TAGC}
    s_waitcnt lgkmcnt(0)
    """)
    def mf(i): a(f"v_mfma_f32_16x16x32_bf16 v[{12+4*i}:{15+4*i}], v[{16+4*i}:{19+4*i}], v[80:83], 0")
    dpp = []
    for q in range(4):
        for rho in range(4):
            for e in range(4):
                i = 4*q + e; d = 12 + 4*i + rho
                dpp.append(f"v_mov_b32_dpp v{84+i}, v{d} quad_perm:[0,0,0,0] {DPPALL}" if rho == 0 else
                           f"v_add_f32_dpp v{84+i}, v{d}, v{84+i} quad_perm:[{rho},{rho},{rho},{rho}] {DPPALL}")
    for i in range(8): mf(i)
    a("v_readfirstlane_b32 s43, v2")
    k = 0
    for i in range(8, 16):
        mf(i)
        for _ in range(2): a(dpp[k]); k += 1
    while k < 64: a(dpp[k]); k += 1
    for vv in range(1, 4):
        for e in range(4):
            a(f"v_cndmask_b32 v{84+e}, v{84+e}, v{84+4*vv+e}, s[{44+2*vv}:{45+2*vv}]")
    a(f"""
    v_cvt_pk_bf16_f32 v88, v84, v85
    v_cvt_pk_bf16_f32 v89, v86, v87
    s_mov_b32 s8, 0x3db504f3
    v_lshlrev_b32 v84, 16, v88
    v_and_b32 v85, 0xffff0000, v88
    v_lshlrev_b32 v86, 16, v89
    v_and_b32 v87, 0xffff0000, v89
    v_mul_f32 v84, s8, v84
    v_mul_f32 v85, s8, v85
    v_mul_f32 v86, s8, v86
    v_mul_f32 v87, s8, v87
    v_cvt_pk_bf16_f32 v88, v84, v85
    v_cvt_pk_bf16_f32 v89, v86, v87
    v_lshlrev_b32 v84, 16, v88
    v_and_b32 v85, 0xffff0000, v88
    v_lshlrev_b32 v86, 16, v89
    v_and_b32 v87, 0xffff0000, v89
    v_max3_f32 v88, v84, v85, v86
    v_max_f32 v88, v88, v87
    s_nop 1
    v_max_f32_dpp v88, v88, v88 quad_perm:[1,0,3,2] {DPPALL}
    s_nop 1
    v_max_f32_dpp v88, v88, v88 quad_perm:[2,3,0,1] {DPPALL}
    s_mov_b64 exec, s[44:45]
    ds_max_f32 v11, v88 offset:{MMAX}
    """)
    g.arrive(C3)
    a(f"""
    s_mov_b32 s8, 0x3fb8aa3b
L_c3:
    ds_read_b32 v2, v3 offset:{C3}
    ds_read_b32 v88, v11 offset:{MMAX}
    s_sub_u32 s42, s42, 1
    s_cbranch_scc1 L_end
    s_waitcnt lgkmcnt(0)
    v_cmp_gt_u32 vcc, 4, v2
    s_cbranch_vccnz L_c3
    v_sub_f32 v84, v84, v88
    v_sub_f32 v85, v85, v88
    v_sub_f32 v86, v86, v88
    v_sub_f32 v87, v87, v88
    v_mul_f32 v84, s8, v84
    v_mul_f32 v85, s8, v85
    v_mul_f32 v86, s8, v86
    v_mul_f32 v87, s8, v87
    v_exp_f32 v84, v84
    v_exp_f32 v85, v85
    v_exp_f32 v86, v86
    v_exp_f32 v87, v87
    v_cvt_pk_bf16_f32 v90, v84, v85
    v_add_f32 v84, v84, v85
    v_cvt_pk_bf16_f32 v91, v86, v87
    ds_write_b64 v5, v[90:91] offset:{PLDS}
    ds_write_b32 v0, v7 offset:{PFLAG}
    v_add_f32 v86, v86, v87
    v_add_f32 v84, v84, v86
    s_nop 1
    v_add_f32_dpp v84, v84, v84 quad_perm:[1,0,3,2] {DPPALL}
    s_nop 1
    v_add_f32_dpp v84, v84, v84 quad_perm:[2,3,0,1] {DPPALL}
    s_mov_b64 exec, s[44:45]
    ds_write_b32 v100, v84 offset:{LSUM}
    """)
    g.arrive(C4, rtn="v2")
    g.stamp(4)
    a(f"""
    s_mov_b64 exec, 15
    v_lshlrev_b32 v36, 6, v1
    v_lshlrev_b32 v4, 2, v1
    ds_read_b128 v[16:19], v36 offset:{LSUM}
    ds_read_b128 v[20:23], v36 offset:{LSUM+16}
    ds_read_b128 v[24:27], v36 offset:{LSUM+32}
    ds_read_b128 v[28:31], v36 offset:{LSUM+48}
    ds_read_b32 v32, v4 offset:{MMAX}
    v_mov_b32 v33, s11
    v_mov_b32 v35, s11
    s_waitcnt lgkmcnt(0)
    v_readfirstlane_b32 s8, v2
    s_cmp_lg_u32 s8, 3
    s_cbranch_scc1 L_Kpost
    v_pk_add_f32 v[16:17], v[16:17], v[18:19]
    v_pk_add_f32 v[20:21], v[20:21], v[22:23]
    v_pk_add_f32 v[24:25], v[24:25], v[26:27]
    v_pk_add_f32 v[28:29], v[28:29], v[30:31]
    v_pk_add_f32 v[16:17], v[16:17], v[20:21]
    v_pk_add_f32 v[24:25], v[24:25], v[28:29]
    v_pk_add_f32 v[16:17], v[16:17], v[24:25]
    v_add_f32 v34, v16, v17
    s_cmp_lg_u32 s43, 0
    s_cbranch_scc1 L_Knl
    global_store_dwordx4 v6, v[32:35], s[36:37]
L_Kpost:
    {"s_setprio 1" if prio else ""}
    s_mov_b64 exec, -1
    s_cmp_eq_u32 s6, 0
    s_cbranch_scc1 L_F1
    s_cmp_eq_u32 s6, 3
    s_cbranch_scc1 {"L_probe" if ydup == 2 else EXIT}
    s_cmp_lg_u32 s6, 1
    s_cbranch_scc1 L_Kend
    s_lshl_b32 s8, s3, 11
    s_lshr_b32 s9, s4, 2
    s_lshl_b32 s9, s9, 4
    s_add_u32 s8, s8, s9
    s_add_u32 s8, s8, {MA}
    s_add_u32 s38, s30, s8
    s_addc_u32 s39, s31, 0
    v_lshlrev_b32 v4, 7, v1
    v_lshlrev_b32 v5, 2, v1
    s_mov_b64 exec, 0xffff
    s_mov_b32 s8, 0x3fb8aa3b
L_Mp_loop:
    global_load_dwordx4 v[20:23], v4, s[38:39] sc1
    s_sub_u32 s42, s42, 1
    s_cbranch_scc1 L_end
    s_waitcnt vmcnt(0)
    v_xor_b32 v2, s11, v21
    v_xor_b32 v16, s11, v23
    v_or_b32 v2, v2, v16
    v_cmp_ne_u32 vcc, 0, v2
    s_cbranch_vccnz L_Mp_loop
    v_max_f32_dpp v18, v20, v20 row_ror:8 {DPPALL}
    """)
    for r in (4, 2, 1):
        a(f"s_nop 1\nv_max_f32_dpp v18, v18, v18 row_ror:{r} {DPPALL}")
    a("""
    v_sub_f32 v16, v20, v18
    v_mul_f32 v16, s8, v16
    v_exp_f32 v16, v16
    s_nop 0
    v_mul_f32 v17, v16, v22
    """)
    for r in (8, 4, 2, 1):
        a(f"s_nop 1\nv_add_f32_dpp v17, v17, v17 row_ror:{r} {DPPALL}")
    a(f"""
    v_rcp_f32 v17, v17
    s_nop 0
    v_mul_f32 v16, v16, v17
    v_and_b32 v16, 0x7fffffff, v16
    ds_write_b32 v5, v16 offset:{FVEC}
    """)
    g.stamp(5)
    g.end()
    g.L = g.cold
    a(f"""
L_Knl:
    global_store_dwordx4 v6, v[32:35], s[36:37] sc1
    s_branch L_Kpost
L_Kend:
    s_cmp_eq_u32 s43, 0
    s_cbranch_scc1 {EXIT}
L_repub:
    s_cmp_lg_u32 s6, 2
    s_cbranch_scc1 L_repub_ret
    """)
    g.lds_spin(QPUB, 1)
    a(f"""
    s_lshl_b32 s8, s10, 9
    s_add_u32 s8, s8, {H1}
    s_add_u32 s38, s30, s8
    s_addc_u32 s39, s31, 0
    s_mov_b32 exec_hi, 0
    ds_read_b128 v[104:107], v6 offset:{H1LDS}
    s_waitcnt lgkmcnt(0)
    global_store_dwordx4 v6, v[104:107], s[38:39] sc1
    s_mov_b32 exec_hi, -1
L_repub_ret:
    s_cmp_eq_u32 s43, 0
    s_cbranch_scc1 L_c2
    """)
    g.end()
    if ydup == 2:
        g.L = g.sec["prb"]
        def meas(cls):
            a(f"""
    s_memtime s[56:57]
    s_load_dword s55, s[38:39], s{62+cls}
    s_waitcnt lgkmcnt(0)
    s_memtime s[58:59]
    s_waitcnt lgkmcnt(0)
    s_sub_u32 s56, s58, s56
    s_min_u32 s{60+cls}, s{60+cls}, s56
            """)
        def vote():
            a(f"""
    s_add_u32 s38, s38, 128
    s_addc_u32 s39, s39, 0
    s_cmp_lt_u32 s61, s60
    s_cselect_b32 s8, s63, s62
    v_mov_b32 v16, s8
    ds_read_b32 v2, v3 offset:{OPUB}
    global_store_dwordx2 v3, v[16:17], s[40:41]
    s_waitcnt lgkmcnt(0)
    v_cmp_lt_u32 vcc, 0, v2
    s_cbranch_vccnz {EXIT}
            """)
        a(f"""
L_probe:
    s_and_b32 s9, s2, 31
    s_lshl_b32 s9, s9, 14
    s_lshr_b32 s8, s2, 5
    s_lshl_b32 s22, s8, 10
    s_add_u32 s9, s9, s22
    s_lshr_b32 s8, s2, 3
    s_xor_b32 s62, s8, s4
    s_and_b32 s62, s62, 1
    s_lshl_b32 s62, s62, 13
    s_xor_b32 s63, s62, 0x2000
    s_add_u32 s9, s9, {PB}
    s_add_u32 s38, s30, s9
    s_addc_u32 s39, s31, 0
    s_getreg_b32 s9, hwreg(HW_REG_XCC_ID, 0, 3)
    s_lshl_b32 s9, s9, 5
    s_add_u32 s8, s8, s9
    s_lshl_b32 s8, s8, 3
    s_add_u32 s8, s8, {VT}
    s_add_u32 s40, s30, s8
    s_addc_u32 s41, s31, 0
    s_mov_b32 s60, -1
    s_mov_b32 s61, -1
    s_mov_b32 s54, 3
    v_mov_b32 v17, s11
    s_mov_b64 exec, 1
L_probe_loop:
        """)
        meas(0); meas(1); vote(); meas(1); meas(0); vote()
        a("s_sub_u32 s54, s54, 1\ns_cbranch_scc0 L_probe_loop")
        g.end()
    g.L = g.sec["fin"]
    a(f"""
L_F1:
    s_cmp_ge_u32 s2, 128
    s_cbranch_scc1 {EXIT}
    s_lshr_b32 s8, s3, 2
    s_lshl_b32 s9, s8, {15 if ydup is None else 16}
    {YSEL}
    s_and_b32 s8, s3, 3
    s_lshl_b32 s8, s8, 7
    s_add_u32 s9, s9, s8
    s_lshl_b32 s8, s4, 4
    s_add_u32 s9, s9, s8
    s_add_u32 s9, s9, {YB}
    s_lshl_b32 s22, s3, 6
    s_lshl_b32 s8, s4, 3
    s_add_u32 s22, s22, s8
    s_add_u32 s36, s30, s9
    s_addc_u32 s37, s31, 0
    {YR}
    s_mov_b32 s44, 0x0c0c0400
    s_mov_b32 s45, 0x04000c0c
    s_movk_i32 s48, 0xff00
    global_load_dwordx4 v[16:19], v6, s[20:21]
    global_load_dwordx4 v[20:23], v6, s[24:25]
    s_waitcnt vmcnt(0)
    """)
    for k in range(4):
        a(f"""
    v_lshlrev_b32 v24, 16, v{16+k}
    v_and_b32 v25, 0xffff0000, v{16+k}
    v_lshlrev_b32 v26, 16, v{20+k}
    v_and_b32 v27, 0xffff0000, v{20+k}
    v_mul_f32 v24, v24, v26
    v_mul_f32 v25, v25, v27
    v_cvt_pk_bf16_f32 v24, v24, v25
    v_lshlrev_b32 v{28+2*k}, 16, v24
    v_and_b32 v{29+2*k}, 0xffff0000, v24
        """)
    a("""
    v_pk_add_f32 v[28:29], v[28:29], v[30:31]
    v_pk_add_f32 v[32:33], v[32:33], v[34:35]
    v_pk_add_f32 v[28:29], v[28:29], v[32:33]
    v_add_f32 v28, v28, v29
    """)
    for r in (8, 4, 2, 1):
        a(f"s_nop 1\nv_add_f32_dpp v28, v28, v28 row_ror:{r} {DPPALL}")
    a("""
    v_mov_b32 v29, v28
    s_nop 1
    v_permlane16_swap_b32 v28, v29
    v_add_f32 v28, v28, v29
    v_mov_b32 v29, v28
    s_nop 1
    v_permlane32_swap_b32 v28, v29
    v_add_f32 v28, v28, v29
    v_cvt_pk_bf16_f32 v28, v28, v28
    v_lshlrev_b32 v28, 16, v28
    v_mul_f32 v28, 0xbfb8aa3b, v28
    v_exp_f32 v28, v28
    s_nop 0
    v_add_f32 v28, 1.0, v28
    v_rcp_f32 v28, v28
    s_nop 0
    v_cvt_pk_bf16_f32 v28, v28, v28
    v_lshlrev_b32 v28, 16, v28
    v_sub_f32 v29, 1.0, v28
    v_cvt_pk_bf16_f32 v29, v29, v29
    v_lshlrev_b32 v29, 16, v29
    v_cmp_gt_u32 vcc, 32, v1
    v_lshrrev_b32 v2, 4, v1
    s_nop 0
    v_cndmask_b32 v28, v29, v28, vcc
    v_lshlrev_b32 v2, 1, v2
    v_add_u32 v30, s22, v2
    """)
    if ydup == 2:
        a(f"""
    s_getreg_b32 s8, hwreg(HW_REG_XCC_ID, 0, 3)
    s_lshl_b32 s8, s8, 8
    s_add_u32 s8, s8, {VT}
    s_add_u32 s38, s30, s8
    s_addc_u32 s39, s31, 0
    v_lshlrev_b32 v4, 3, v1
    v_mov_b32 v31, 0xff800000
L_fw:
    s_sleep 1
    ds_read_b32 v2, v3 offset:{FVEC}
    s_sub_u32 s42, s42, 1
    s_cbranch_scc1 L_end
    s_waitcnt lgkmcnt(0)
    v_cmp_eq_u32 vcc, v31, v2
    s_cbranch_vccnz L_fw
    s_mov_b32 exec_hi, 0
    global_load_dwordx2 v[32:33], v4, s[38:39] sc1
    s_waitcnt vmcnt(0)
    v_cmp_eq_u32 vcc, s11, v33
    v_cmp_ne_u32 s[46:47], 0, v32
    s_mov_b32 exec_hi, -1
    s_bcnt1_i32_b32 s8, vcc_lo
    s_and_b32 s9, vcc_lo, s46
    s_bcnt1_i32_b32 s9, s9
    s_lshl_b32 s9, s9, 1
    s_cmp_gt_u32 s9, s8
    s_cselect_b32 s8, 0x2000, 0
    v_add_u32 v5, s8, v5
        """)
        if stamps: a("s_mov_b32 s84, s8\ns_mov_b32 s85, 1")
    g.lds_spin(C6, ystart)
    g.stamp(6)
    a("""
L_Yp_loop:
    global_load_dwordx4 v[16:19], v5, s[36:37] sc1
    s_sub_u32 s42, s42, 1
    s_cbranch_scc1 L_end
    s_waitcnt vmcnt(0)
    v_perm_b32 v2, v17, v16, s44
    v_perm_b32 v4, v19, v18, s45
    v_or_b32 v2, v2, v4
    v_cmp_ne_u32 vcc, s11, v2
    s_mov_b64 exec, vcc
    s_cbranch_vccnz L_Yp_loop
    s_mov_b64 exec, -1
    """)
    g.stamp(7)
    a(f"""
    v_permlane16_swap_b32 v16, v17
    v_permlane16_swap_b32 v18, v19
    v_and_b32 v16, s48, v16
    v_and_b32 v17, s48, v17
    v_and_b32 v18, s48, v18
    v_and_b32 v19, s48, v19
    v_add_f32 v16, v16, v17
    v_add_f32 v18, v18, v19
    """)
    for r in (8, 4, 2, 1):
        a(f"s_nop 0\nv_add_f32_dpp v16, v16, v16 row_ror:{r} {DPPALL}\nv_add_f32_dpp v18, v18, v18 row_ror:{r} {DPPALL}")
    a("""
    v_cvt_pk_bf16_f32 v16, v16, v18
    v_lshlrev_b32 v17, 16, v16
    v_and_b32 v18, 0xffff0000, v16
    v_mul_f32 v17, v28, v17
    v_mul_f32 v18, v28, v18
    v_cvt_pk_bf16_f32 v16, v17, v18
    v_cvt_pk_bf16_f32 v17, v17, v18
    s_nop 1
    v_permlane32_swap_b32 v16, v17
    v_lshlrev_b32 v18, 16, v16
    v_and_b32 v19, 0xffff0000, v16
    v_lshlrev_b32 v20, 16, v17
    v_and_b32 v21, 0xffff0000, v17
    v_add_f32 v18, v18, v20
    v_add_f32 v19, v19, v21
    v_cvt_pk_bf16_f32 v16, v18, v19
    s_mov_b64 exec, 0x10001
    global_store_short v30, v16, s[26:27]
    global_store_short_d16_hi v30, v16, s[26:27] offset:4
    """)
    g.stamp(8)
    a(f"""
    s_cmp_lg_u32 s2, 0
    s_cbranch_scc1 {EXIT}
    v_mov_b32 v2, s11
    global_store_dword v3, v2, s[30:31]
    """)
    g.end()

    g.L = g.sec["vpre"]
    a(f"""
    s_setprio 1
    s_lshl_b32 s8, s3, 14
    s_lshl_b32 s23, s4, {6 if o64 else 8}
    s_add_u32 s8, s8, s23
    s_add_u32 s8, s8, {OA}
    v_lshrrev_b32 v2, {2 if o64 else 4}, v1
    v_and_b32 v4, {3 if o64 else 15}, v1
    v_lshlrev_b32 v4, 4, v4
    v_lshl_add_u32 v4, v2, {10 if o64 else 12}, v4
    v_lshrrev_b32 v2, 4, v1
    v_mov_b32 v8, -1
    v_mov_b32 v9, -1
    v_mov_b32 v10, -1
    v_mov_b32 v11, -1
    s_waitcnt lgkmcnt(0)
    s_add_u32 s36, s30, s8
    s_addc_u32 s37, s31, 0
    s_add_u32 s14, s14, s22
    s_addc_u32 s15, s15, 0
    s_load_dword s11, s[30:31], 0
    s_cmp_lg_u32 s6, 0
    s_cbranch_scc1 L_V1
    global_store_dwordx4 v4, v[8:11], s[36:37]
    s_and_b32 s8, s4, 3
    s_lshl_b32 s8, s8, {15 if ydup is None else 16}
    {YP}
    s_add_u32 s8, s8, {YB}
    s_add_u32 s40, s30, s8
    s_addc_u32 s41, s31, 0
    {YW}
L_V1:
    s_barrier
    """)
    if touch:
        for w in range(3): a(f"s_cmp_eq_u32 s6, {w}\ns_cbranch_scc1 L_stub_{4+w}")
        a("s_branch L_stub_7")
    else: a("s_branch L_touch_ret2")
    g.L = g.sec["viss"]
    a(f"""
L_touch_ret2:
    s_cmp_lg_u32 s6, 0
    s_cbranch_scc1 L_V2
    s_waitcnt vmcnt(0)
    ds_write_b32 v3, v7 offset:{CCLR}
L_V2:
    s_mov_b32 s52, 0x05040100
    s_mov_b32 s53, 0x07060302
    v_lshlrev_b32 v13, 6, v2
    v_bfe_u32 v2, v1, 2, 2
    v_lshl_add_u32 v13, v2, 4, v13
    s_lshl_b32 s8, s6, 9
    v_add_u32 v13, s8, v13
    v_add_u32 v11, s9, v6
    s_lshl_b32 s8, s6, 11
    v_add_u32 v14, s8, v6
    s_mov_b32 s54, 0
    """)
    g.stamp(5)
    done = 0
    for p in range(8):
        i = 2*p
        need = 18 + i - LV
        a(f"v_xor_b32 v5, {XM*i}, v11\nv_xor_b32 v12, {XM*(i+1)}, v11")
        if need <= 16: g.lds_spin(CRK, need, vaddr0="v0", add="s58" if boostv else None)
        else:
            if LVS < LV2 and i + 2 - LVS > 0:
                l = g.lab("Lvs")
                a(f"ds_read_b32 v2, v3 offset:{C2}\ns_waitcnt lgkmcnt(0)\n" + ("v_add_u32 v2, s58, v2\n" if boostv else "") + f"v_cmp_gt_u32 vcc, 4, v2\ns_cbranch_vccz {l}\ns_waitcnt vmcnt({LVS-2})\n{l}:")
            if i + 2 - LV2 > 0: a(f"s_waitcnt vmcnt({LV2-2})")
        a(f"global_load_dwordx4 v[{16+4*i}:{19+4*i}], v5, s[14:15] nt")
        a(f"global_load_dwordx4 v[{20+4*i}:{23+4*i}], v12, s[14:15] nt")
        if p == 7: g.arrive(CV)
        if need > 16 and i + 2 - LV2 > 0 and done < 4:
            perm_pair(16, 80, done); done += 1
    g.stamp(1)
    a("s_branch L_V2b")
    g.L = g.sec["v2"]
    a("L_V2b:")
    if prio: a("s_setprio 3")
    while done < 4:
        a(f"s_waitcnt vmcnt({14-2*done})")
        if LW and 2*done+2 >= 18-LW: g.signal(CRV, 2*done+2, "v0")
        perm_pair(16, 80, done); done += 1
    for t in range(4):
        l = g.lab("Lvp")
        a(f"""
    s_cmp_lg_u32 s54, 0
    s_cbranch_scc1 {l}
    ds_read_b32 v2, v0 offset:{PFLAG}
    s_waitcnt lgkmcnt(0)
    v_cmp_eq_u32 vcc, 0, v2
    s_cbranch_vccnz {l}
    s_call_b64 s[56:57], L_AB
{l}:
    s_waitcnt vmcnt({6-2*t})
        """)
        if LW and 10+2*t >= 18-LW: g.signal(CRV, 10+2*t, "v0")
        perm_pair(48, 16, t)
    g.stamp(3)
    a("s_cmp_lg_u32 s54, 0\ns_cbranch_scc1 L_V3")
    g.lds_spin(PFLAG, 1, vaddr0="v0")
    a("s_call_b64 s[56:57], L_AB\nL_V3:")
    for j in range(8):
        acc = 144 + 4*(j//4); var = j % 4
        a(f"v_mfma_f32_16x16x32_bf16 v[{acc}:{acc+3}], v[{128+4*var}:{131+4*var}], v[{16+4*j}:{19+4*j}], v[{acc}:{acc+3}]")
    a(f"""
    s_nop 3
    ds_write_b128 v14, v[144:147] offset:{OPART}
    s_nop 2
    ds_write_b128 v14, v[148:151] offset:{OPART+1024}
    """)
    g.arrive(C5, rtn="v2")
    a("s_mov_b64 exec, -1")
    for p in range(4):
        a(f"ds_read_b128 v[{16+8*p}:{19+8*p}], v6 offset:{OPART+2048*p}")
        a(f"ds_read_b128 v[{20+8*p}:{23+8*p}], v6 offset:{OPART+2048*p+1024}")
    a(f"""
    s_waitcnt lgkmcnt(8)
    v_readfirstlane_b32 s8, v2
    s_cmp_lg_u32 s8, 3
    s_cbranch_scc1 {EXIT}
    s_waitcnt lgkmcnt(4)
    """)
    for k in range(4): a(f"v_pk_add_f32 v[{16+2*k}:{17+2*k}], v[{16+2*k}:{17+2*k}], v[{24+2*k}:{25+2*k}]")
    a("s_waitcnt lgkmcnt(0)")
    for k in range(4): a(f"v_pk_add_f32 v[{32+2*k}:{33+2*k}], v[{32+2*k}:{33+2*k}], v[{40+2*k}:{41+2*k}]")
    for k in range(4): a(f"v_pk_add_f32 v[{16+2*k}:{17+2*k}], v[{16+2*k}:{17+2*k}], v[{32+2*k}:{33+2*k}]")
    for k in range(4): a(f"v_cvt_pk_bf16_f32 v{8+k}, v{16+2*k}, v{17+2*k}")
    a("s_cmp_lg_u32 s43, 0")
    for k in range(4): a(f"v_min_u32 v{8+k}, -2, v{8+k}")
    a(f"s_cbranch_scc1 L_Vnl\nglobal_store_dwordx4 v4, v[8:11], s[36:37]\nds_write_b32 v3, v7 offset:{OPUB}")
    g.stamp(4)
    g.end()
    a(f"""
L_AB:
    ds_read_b128 v[8:11], v13 offset:{PLDS}
    ds_read_b128 v[140:143], v13 offset:{PLDS+256}
    ds_read_b32 v2, v3 offset:{NONLOC}
    s_mov_b32 s54, 1
    """)
    g.stamp(2)
    a("s_waitcnt lgkmcnt(0)")
    def cnd(b, var):
        src = 8 if b == 0 else 140
        for r in range(4):
            a(f"v_cndmask_b32 v{112+16*b+4*var+r}, 0, v{src+r}, s[{44+2*var}:{45+2*var}]")
    def m0(j):
        acc = 144 + 4*(j//4); var = j % 4
        c = "0" if var == 0 else f"v[{acc}:{acc+3}]"
        a(f"v_mfma_f32_16x16x32_bf16 v[{acc}:{acc+3}], v[{112+4*var}:{115+4*var}], v[{80+4*j}:{83+4*j}], {c}")
    cnd(0, 0); cnd(0, 1)
    m0(0); m0(4); cnd(0, 2); m0(1); m0(5); cnd(0, 3); m0(2); m0(6); cnd(1, 0); m0(3); m0(7)
    cnd(1, 1); cnd(1, 2); cnd(1, 3)
    a("v_readfirstlane_b32 s43, v2\ns_setpc_b64 s[56:57]")
    g.L = g.cold
    a(f"""
L_Vnl:
    global_store_dwordx4 v4, v[8:11], s[36:37] sc1
    ds_write_b32 v3, v7 offset:{OPUB}
    s_add_u32 s11, s11, {TAGC}
    s_lshl_b32 s8, s10, 7
    s_add_u32 s8, s8, {MA}
    s_add_u32 s38, s30, s8
    s_addc_u32 s39, s31, 0
    v_mov_b32 v2, s11
    s_mov_b64 exec, 1
    s_waitcnt vmcnt(0)
    global_store_dword v3, v2, s[38:39] offset:64 sc1
    """)
    g.end()
    if stamps:
        a(f"""
L_flush:
    s_waitcnt lgkmcnt(0)
L_flush_w:
    s_sleep 32
    s_memrealtime s[90:91]
    s_waitcnt lgkmcnt(0)
    s_sub_u32 s8, s90, s64
    s_cmp_lt_u32 s8, 1500
    s_cbranch_scc1 L_flush_w
    s_mov_b64 exec, 1
    s_lshl_b32 s8, s7, 2
    s_add_u32 s8, s8, s6
    s_lshl_b32 s8, s8, 7
    s_mul_i32 s9, s2, 1536
    s_add_u32 s8, s8, s9
    s_add_u32 s8, s8, {STAMP}
    s_add_u32 s8, s30, s8
    s_addc_u32 s9, s31, 0
    v_mov_b32 v3, 0
        """)
        for k in range(12):
            a(f"v_mov_b32 v4, s{64+2*k}\nv_mov_b32 v5, s{65+2*k}\nglobal_store_dwordx2 v3, v[4:5], s[8:9] offset:{8*k}\ns_nop 1")
    a("L_end:\ns_endpgm")
    mk = lambda b: wrap(b + g.cold, 768, LDS_BYTES, 152, 96)
    hot = sum((g.sec[k] for k in ("start", "vpre", "kiss", "q2", "viss", "k2", "wo", "v2", "fin", "prb")), [])
    if touch:
        body, n = insert_stubs(hot, mk, nchains=4, tail=sum(1 for l in g.cold if is_insn(l)), two=True)
    else:
        body = hot
    return mk(body)

if __name__ == "__main__":
    from build import build
    import json
    cfgs = json.loads(sys.argv[1]) if len(sys.argv) > 1 else {"v8a": {}, "v8a_s": {"stamps": True}}
    for n, c in cfgs.items():
        p = f"bench/{n}.s"
        open(p, "w").write(gen(**c)); build(p)
    print(" ".join(f"-v {n}.co:256:768:16384" for n in cfgs))
    print(", ".join(f'"bench/{n}.co"' for n in cfgs))
```

```python
import gen12, sys
from asmlib import KN
DOC = """; ---------------------------------------------------------------------------------------------
; ---------------------------------------------------------------------------------------------
"""
s = gen12.gen()
s = s.replace('.amdgcn_target', DOC + '.amdgcn_target', 1)
open('gated_mix__sliding_block_cached__sliding_block_cached__decode.s', 'w').write(s)
```

```python
import gen12
from asmlib import KN
from build import build
def mk(n, wg):
    s = gen12.gen()
    s = s.replace(KN + ":\n", KN + ":\n    s_memrealtime s[90:91]\n", 1)
    s = s.replace("L_Kend:\n", f"""L_Kend:
    s_cmp_lg_u32 s2, {wg}
    s_cbranch_scc1 L_Kend2
L_diag:
    s_memrealtime s[92:93]
    s_waitcnt lgkmcnt(0)
    s_sub_u32 s9, s92, s90
    s_cmp_lt_u32 s9, 2500
    s_cbranch_scc1 L_diag
L_Kend2:
""", 1)
    p=f"bench/{n}.s"; open(p,"w").write(s); build(p)
for w in (0,2,4,7): mk(f"oh_{w}", w)
```
